```python
import torch

def _softmax(x, axis=-1):
    return torch.softmax(x, dim=axis)
def _gelu(x):
    return torch.nn.functional.gelu(x, approximate="tanh")
def _silu(x):
    return torch.nn.functional.silu(x)
def _sigmoid(x):
    return torch.sigmoid(x)
def _layernorm(x, axis=-1, eps=1e-5):
    m = x.mean(dim=axis, keepdim=True)
    v = x.var(dim=axis, keepdim=True, unbiased=False)
    return (x - m) / torch.sqrt(v + eps)
def _scatter_add(tgt, idx, src, axis=0):
    return tgt.clone().index_add_(axis, idx, src)
def _segment_sum(src, seg, n):
    out = torch.zeros((n,) + src.shape[1:], dtype=src.dtype)
    return out.index_add_(0, seg, src)
def _pad(x, pw):
    flat = tuple(v for pair in reversed(pw) for v in pair)
    return torch.nn.functional.pad(x, flat)

kernel_name = 'concat_heads__ssm_conv_s5__grouped_kv_mqa__prompt'

def setup_inputs():

    _w = (lambda a: (lambda t: t.to(torch.bfloat16) if t.is_floating_point() else t)(torch.as_tensor(a)))
    def _A_setup():
        B, S, D = 1, 2048, 1024
        P = D
        Lambda_re = -0.5 * (lambda _x: torch.exp(torch.as_tensor(_x)))((lambda *s: torch.randn(*s, dtype=torch.bfloat16) * 0.4)(P))
        Lambda_im = (lambda *s: torch.randn(*s, dtype=torch.bfloat16) * 0.4)(P) * 1.0
        B_re = (lambda *s: torch.randn(*s, dtype=torch.bfloat16) * 0.4)(P, D) * (D ** -0.5)
        B_im = (lambda *s: torch.randn(*s, dtype=torch.bfloat16) * 0.4)(P, D) * (D ** -0.5)
        C_re = (lambda *s: torch.randn(*s, dtype=torch.bfloat16) * 0.4)(D, P) * (P ** -0.5)
        C_im = (lambda *s: torch.randn(*s, dtype=torch.bfloat16) * 0.4)(D, P) * (P ** -0.5)
        log_dt = (lambda *s: torch.randn(*s, dtype=torch.bfloat16) * 0.4)(P) * 0.3 - 2.0
        Dskip = (lambda *s: torch.randn(*s, dtype=torch.bfloat16) * 0.05)(D)
        return {
            "x": _w((lambda *s: torch.randn(*s, dtype=torch.bfloat16) * 0.05)(B, S, D)),
            "Lambda_re": _w(Lambda_re),
            "Lambda_im": _w(Lambda_im),
            "B_re": _w(B_re),
            "B_im": _w(B_im),
            "C_re": _w(C_re),
            "C_im": _w(C_im),
            "log_dt": _w(log_dt),
            "Dskip": _w(Dskip),
        }
    _A_in = _A_setup()

    def _B_setup():
        B, S, D, H = 1, 2048, 1024, 32
        Dh = D // H
        return {
            "x": _w((lambda *s: torch.randn(*s, dtype=torch.bfloat16) * 0.05)(B, S, D)),
            "wq": _w((lambda *s: torch.randn(*s, dtype=torch.bfloat16) * 0.8)(D, H * Dh)),
            "wk": _w((lambda *s: torch.randn(*s, dtype=torch.bfloat16) * 0.8)(D, Dh)),
            "wv": _w((lambda *s: torch.randn(*s, dtype=torch.bfloat16) * 0.05)(D, Dh)),
            "wo": _w((lambda *s: torch.randn(*s, dtype=torch.bfloat16) * 0.05)(H * Dh, D)),
        }
    _B_in = _B_setup()

    return {
        "A_x": _A_in["x"],
        "A_Lambda_re": _A_in["Lambda_re"],
        "A_Lambda_im": _A_in["Lambda_im"],
        "A_B_re": _A_in["B_re"],
        "A_B_im": _A_in["B_im"],
        "A_C_re": _A_in["C_re"],
        "A_C_im": _A_in["C_im"],
        "A_log_dt": _A_in["log_dt"],
        "A_Dskip": _A_in["Dskip"],
        "B_x": _B_in["x"],
        "B_wq": _B_in["wq"],
        "B_wk": _B_in["wk"],
        "B_wv": _B_in["wv"],
        "B_wo": _B_in["wo"],
    }

def reference(A_x, A_Lambda_re, A_Lambda_im, A_B_re, A_B_im, A_C_re, A_C_im, A_log_dt, A_Dskip, B_x, B_wq, B_wk, B_wv, B_wo):
    def _A_ref(x, Lambda_re, Lambda_im, B_re, B_im, C_re, C_im, log_dt, Dskip):
        Bsz, L, H = x.shape
        Lam = Lambda_re + 1j * Lambda_im
        Bmat = B_re + 1j * B_im
        Cmat = C_re + 1j * C_im
        dt = torch.exp(log_dt)
        Lam_bar = torch.exp(dt * Lam)
        B_bar = ((Lam_bar - 1.0) / Lam)[:, None] * Bmat
        Bu = torch.einsum("bld,pd->blp", x + 0j, B_bar)
        h = torch.zeros_like(Bu[:, 0, :])
        hs = []
        for t in range(L):
            h = Lam_bar[None, :] * h + Bu[:, t, :]
            hs.append(h)
        hseq = torch.stack(hs, 1)
        y = 2.0 * torch.einsum("blp,dp->bld", hseq, Cmat).real + x * Dskip[None, None, :]
        return y

    def _B_ref(x, wq, wk, wv, wo):
        B, S, D = x.shape
        H = 32
        Dh = D // H
        q = (lambda x, *d: x.permute(*d))((x @ wq).reshape(B, S, H, Dh), 0, 2, 1, 3)
        k = x @ wk
        v = x @ wv
        scores = torch.einsum("bhqd,bkd->bhqk", q, k) * (Dh ** -0.5)
        p = _softmax(scores, axis=-1)
        o = torch.einsum("bhqk,bkd->bhqd", p, v)
        return (lambda x, *d: x.permute(*d))(o, 0, 2, 1, 3).reshape(B, S, H * Dh) @ wo

    a = _A_ref(A_x, A_Lambda_re, A_Lambda_im, A_B_re, A_B_im, A_C_re, A_C_im, A_log_dt, A_Dskip)
    b = _B_ref(B_x, B_wq, B_wk, B_wv, B_wo)
    return torch.concatenate([a, b], axis=-1)
```

```python
import struct


def f32(x):
    return "0x%08x" % struct.unpack("<I", struct.pack("<f", x))[0]


def vr(b, n=1):
    return f"v{b}" if n == 1 else f"v[{b}:{b + n - 1}]"


def sr(b, n=1):
    return f"s{b}" if n == 1 else f"s[{b}:{b + n - 1}]"


class Alloc:
    def __init__(self, start, limit):
        self.n = start
        self.limit = limit
        self.hi = start

    def get(self, cnt=1, align=1):
        self.n = (self.n + align - 1) // align * align
        r = self.n
        self.n += cnt
        self.hi = max(self.hi, self.n)
        assert self.n <= self.limit, f"out of registers ({self.n} > {self.limit})"
        return r

    def mark(self):
        return self.n

    def reset(self, m):
        self.n = m


class Asm:
    def __init__(self):
        self.lines = []

    def __call__(self, s):
        for l in s.strip("\n").split("\n"):
            l = l.strip()
            if not l:
                continue
            if l.endswith(":") or l.startswith("."):
                self.lines.append(l)
            else:
                self.lines.append("    " + l)

    def c(self, s):
        self.lines.append("    ; " + s)

    def text(self):
        return "\n".join(self.lines) + "\n"

    def mfma(self, d, a, b, c=None):
        cs = vr(d, 16) if c is None else (c if isinstance(c, str) else vr(c, 16))
        self(f"v_mfma_f32_32x32x16_bf16 {vr(d, 16)}, {vr(a, 4)}, {vr(b, 4)}, {cs}")

    def rd128(self, d, addr, off):
        assert 0 <= off < 65536, off
        self(f"ds_read_b128 {vr(d, 4)}, v{addr} offset:{off}")

    def rdtr(self, d, addr, off):
        assert 0 <= off < 65536, off
        self(f"ds_read_b64_tr_b16 {vr(d, 2)}, v{addr} offset:{off}")

    def dma(self, addr, srd, soff, off=0):
        o = f" offset:{off}" if off else ""
        self(f"buffer_load_dwordx4 v{addr}, {sr(srd, 4)}, {soff} offen{o} lds")

    def srd(self, d, base, size):
        self(f"s_mov_b32 s{d}, s{base}")
        self(f"s_mov_b32 s{d + 1}, s{base + 1}")
        self(f"s_mov_b32 s{d + 2}, {hex(size)}")
        self(f"s_mov_b32 s{d + 3}, 0x20000")

    def srd_off(self, d, base, off, size):
        self(f"s_add_u32 s{d}, s{base}, {hex(off)}")
        self(f"s_addc_u32 s{d + 1}, s{base + 1}, 0")
        self(f"s_mov_b32 s{d + 2}, {hex(size)}")
        self(f"s_mov_b32 s{d + 3}, 0x20000")

    def srd_sel(self, d, base_t, base_f, size):
        self(f"s_cselect_b32 s{d}, s{base_t}, s{base_f}")
        self(f"s_cselect_b32 s{d + 1}, s{base_t + 1}, s{base_f + 1}")
        self(f"s_mov_b32 s{d + 2}, {hex(size)}")
        self(f"s_mov_b32 s{d + 3}, 0x20000")

    def wait(self, vm=None, lgkm=None):
        p = []
        if vm is not None:
            assert 0 <= vm <= 63
            p.append(f"vmcnt({vm})")
        if lgkm is not None:
            assert 0 <= lgkm <= 15
            p.append(f"lgkmcnt({lgkm})")
        self("s_waitcnt " + " ".join(p))

    def nop(self, n):
        while n > 0:
            k = min(n, 16)
            self(f"s_nop {k - 1}")
            n -= k


def kernel_head(name):
    return f""".globl {name}
.p2align 8
.type {name},@function
{name}:
"""


def kernel_desc(name, vgpr, sgpr=96):
    acc = (vgpr + 3) // 4 * 4
    return f""".p2align 6
.amdhsa_kernel {name}
  .amdhsa_next_free_vgpr {vgpr}
  .amdhsa_next_free_sgpr {sgpr}
  .amdhsa_accum_offset {acc}
  .amdhsa_group_segment_fixed_size 0
  .amdhsa_kernarg_size 136
  .amdhsa_user_sgpr_count 2
  .amdhsa_user_sgpr_kernarg_segment_ptr 1
  .amdhsa_system_sgpr_workgroup_id_x 1
.end_amdhsa_kernel
"""
```

```python
import math
import sys
from asmlib import *

NAME = "concat_heads__ssm_conv_s5__grouped_kv_mqa__prompt"

WS_Q = 0
WS_O = 4 << 20
WS_H = 8 << 20
WS_KV = 16 << 20
WS_E = WS_KV + (256 << 10)
WS_SIZE = WS_E + (128 << 10)

P_XA, P_LRE, P_LIM, P_BRE, P_BIM, P_CRE, P_CIM, P_LDT = 36, 38, 40, 42, 44, 46, 48, 50
P_DSK, P_XB, P_WQ, P_WK, P_WV, P_WO, P_OUT, P_DBG, P_WS = 52, 54, 56, 58, 60, 62, 64, 66, 68
S_W, S_MB, S_NB, S_K0 = 3, 4, 5, 6
LOG2E = 1.4426950408889634
KSCALE = LOG2E / math.sqrt(32.0)


def prologue(a, tag):
    a(f"""
    s_cmp_ge_u32 s2, 256
    s_cbranch_scc1 L_{tag}_end
    s_load_dwordx16 s[36:51], s[0:1], 0
    s_load_dwordx16 s[52:67], s[0:1], 64
    s_load_dwordx2 s[68:69], s[0:1], 128
    v_lshrrev_b32 v1, 6, v0
    s_and_b32 s70, s2, 7
    v_readfirstlane_b32 s{S_W}, v1
    s_lshr_b32 s71, s2, 3
    s_and_b32 s72, s70, 3
    s_lshr_b32 s73, s70, 2
    s_and_b32 s74, s71, 3
    s_lshr_b32 s75, s71, 2
    s_lshl_b32 s{S_MB}, s72, 2
    s_add_u32 s{S_MB}, s{S_MB}, s74
    s_lshl_b32 s{S_NB}, s73, 3
    s_add_u32 s{S_NB}, s{S_NB}, s75
    s_lshl_b32 s{S_K0}, s75, 1
    s_lshl_b32 s74, s74, 2
    s_add_u32 s{S_K0}, s{S_K0}, s74
    s_and_b32 s{S_K0}, s{S_K0}, 15
    v_and_b32 v0, 63, v0
    """)


def row_frag_addrs(a, dst, n_ks, vn, vhf, tmp, rowbase_s, extra):
    a(f"""
    v_bfe_u32 v{tmp}, v{vn}, 1, 3
    v_xor_b32 v{tmp}, v{tmp}, v{vhf}
    v_lshlrev_b32 v{tmp}, 4, v{tmp}
    v_lshl_add_u32 v{tmp}, v{vn}, 7, v{tmp}
    """)
    for ks in range(n_ks):
        a(f"v_xor_b32 v{dst + ks}, {ks * 32}, v{tmp}")
        a(f"v_add_u32 v{dst + ks}, s{rowbase_s}, v{dst + ks}")
        if extra:
            a(f"v_add_u32 v{dst + ks}, {hex(extra)}, v{dst + ks}")


def csq(a, r, i, t):
    a(f"""
    v_mul_f32 v{t}, v{i}, v{i}
    v_mul_f32 v{i}, v{r}, v{i}
    v_fma_f32 v{r}, v{r}, v{r}, -v{t}
    v_add_f32 v{i}, v{i}, v{i}
    """)


def cmad(a, dr, di, mr, mi, xr, xi, ur, ui):
    a(f"""
    v_fma_f32 v{dr}, v{mr}, v{xr}, v{ur}
    v_fma_f32 v{di}, v{mr}, v{xi}, v{ui}
    v_fma_f32 v{dr}, -v{mi}, v{xi}, v{dr}
    v_fmac_f32 v{di}, v{mi}, v{xr}
    """)


K1_SCR_KV = 128 * 1024
K1_SCR_E = 144 * 1024
K1_LDS = 146 * 1024


def gen_k1():
    a = Asm()
    prologue(a, "k1")
    a(f"""
    s_cmp_ge_u32 s{S_W}, 4
    s_cbranch_scc1 L_k1_loader
    """)
    v = Alloc(1, 256)
    vn, vhf, t0, t1, t2, t3 = (v.get() for _ in range(6))
    vA = v.get(4)
    vB = v.get(4)
    vW, vKX, vKW = v.get(), v.get(), v.get()
    vEw, vEr, vEst, vFl, vFlv = (v.get() for _ in range(5))
    lr, li, cr, nci, ncr, m32r, m32i, m128r, m128i, nli = (v.get() for _ in range(10))
    Es = v.get(8, 2)
    ee = v.get(30, 2)
    accU = v.get(64, 4)
    accQ = v.get(32, 4)
    accK = v.get(16, 4)
    fr = v.get(48, 4)
    fkx = v.get(4, 4)
    fkw = v.get(4, 4)
    S_WM, S_WN, S_ISV, S_TS = 76, 77, 78, 79
    SRD_WS, SRD_E, SRD_DBG, SRD_T0, SRD_T1, SRD_T2 = 8, 12, 16, 20, 24, 28
    a(f"""
    s_and_b32 s{S_WM}, s{S_W}, 1
    s_lshr_b32 s{S_WN}, s{S_W}, 1
    s_and_b32 s{S_TS}, s{S_NB}, 3
    s_bfe_u32 s{S_ISV}, s{S_NB}, 0x10002
    v_and_b32 v{vn}, 31, v0
    v_lshrrev_b32 v{vhf}, 5, v0
    s_lshl_b32 s70, s{S_NB}, 6
    s_lshl_b32 s71, s{S_WN}, 5
    s_add_u32 s70, s70, s71
    v_add_u32 v{t0}, s70, v{vn}
    v_lshlrev_b32 v{t1}, 1, v{t0}
    s_waitcnt lgkmcnt(0)
    """)
    a.srd(SRD_T0, P_LRE, 2048)
    a.srd(SRD_T1, P_LIM, 2048)
    a.srd(SRD_T2, P_LDT, 2048)
    a(f"""
    buffer_load_ushort v{lr}, v{t1}, {sr(SRD_T0, 4)}, 0 offen
    buffer_load_ushort v{li}, v{t1}, {sr(SRD_T1, 4)}, 0 offen
    buffer_load_ushort v{cr}, v{t1}, {sr(SRD_T2, 4)}, 0 offen
    """)
    a.srd(SRD_WS, P_WS, WS_SIZE)
    a.srd_off(SRD_E, P_WS, WS_E, 128 << 10)
    a.srd(SRD_DBG, P_DBG, 256)
    a(f"""
    s_lshl_b32 s71, s{S_MB}, 13
    v_lshl_add_u32 v{vEst}, v{t0}, 3, s71
    """)
    a(f"s_lshl_b32 s70, s{S_WM}, 13")
    row_frag_addrs(a, vA, 4, vn, vhf, t0, 70, 0)
    a(f"s_lshl_b32 s70, s{S_WN}, 13")
    a(f"s_add_u32 s70, s70, 0x10000")
    for ks in range(4):
        a(f"v_xor_b32 v{vB + ks}, {ks * 32}, v{t0}")
        a(f"v_add_u32 v{vB + ks}, s70, v{vB + ks}")
    a(f"""
    s_lshl_b32 s70, s{S_W}, 5
    s_lshl_b32 s71, s{S_TS}, 12
    v_xor_b32 v{vKX}, s70, v{t0}
    v_add_u32 v{vKX}, s71, v{vKX}
    """)
    a(f"""
    v_bfe_u32 v{t0}, v0, 2, 2
    v_lshl_add_u32 v{t1}, v{vhf}, 3, v{t0}
    v_bfe_u32 v{t2}, v0, 4, 1
    v_and_b32 v{t3}, 3, v0
    v_lshlrev_b32 v{t3}, 3, v{t3}
    v_lshl_add_u32 v{t3}, v{t2}, 5, v{t3}
    s_lshl_b32 s70, s{S_W}, 10
    s_add_u32 s70, s70, 0x12000
    v_lshl_add_u32 v{vKW}, v{t1}, 6, v{t3}
    v_add_u32 v{vKW}, s70, v{vKW}
    s_lshl_b32 s70, s{S_WN}, 6
    v_add_u32 v{t3}, s70, v{t3}
    v_lshrrev_b32 v{t0}, 1, v{t0}
    v_lshlrev_b32 v{t0}, 6, v{t0}
    v_xor_b32 v{t3}, v{t3}, v{t0}
    v_lshl_add_u32 v{vW}, v{t1}, 7, v{t3}
    v_add_u32 v{vW}, 0x10000, v{vW}
    """)
    a(f"""
    s_lshl_b32 s70, s{S_WN}, 10
    s_add_u32 s70, s70, {K1_SCR_E}
    v_lshl_add_u32 v{vEr}, v{vn}, 3, s70
    s_lshl_b32 s71, s{S_WM}, 9
    v_lshl_add_u32 v{vEw}, v{vhf}, 8, v{vEr}
    v_add_u32 v{vEw}, s71, v{vEw}
    """)
    for i in range(64):
        a(f"v_mov_b32 v{accU + i}, 0")
    for i in range(32):
        a(f"v_mov_b32 v{accQ + i}, 0")
    for i in range(16):
        a(f"v_mov_b32 v{accK + i}, 0")
    a.c("lambda_bar, 2c, powers")
    a(f"""
    s_waitcnt vmcnt(0)
    v_lshlrev_b32 v{cr}, 16, v{cr}
    v_mul_f32 v{cr}, {f32(LOG2E)}, v{cr}
    v_exp_f32 v{cr}, v{cr}
    v_lshlrev_b32 v{t0}, 16, v{lr}
    v_lshlrev_b32 v{t1}, 16, v{li}
    v_cvt_pk_bf16_f32 v{cr}, v{cr}, v{cr}
    v_lshlrev_b32 v{cr}, 16, v{cr}
    v_mul_f32 v{t2}, v{cr}, v{t0}
    v_mul_f32 v{t3}, v{cr}, v{t1}
    v_mul_f32 v{t2}, {f32(LOG2E)}, v{t2}
    v_mul_f32 v{t3}, {f32(1.0 / (2 * math.pi))}, v{t3}
    v_exp_f32 v{t2}, v{t2}
    v_rndne_f32 v{cr}, v{t3}
    v_sub_f32 v{t3}, v{t3}, v{cr}
    v_cos_f32 v{lr}, v{t3}
    v_sin_f32 v{li}, v{t3}
    v_mul_f32 v{cr}, v{t0}, v{t0}
    v_fmac_f32 v{cr}, v{t1}, v{t1}
    v_rcp_f32 v{t3}, v{cr}
    v_mul_f32 v{lr}, v{lr}, v{t2}
    v_mul_f32 v{li}, v{li}, v{t2}
    v_add_f32 v{t3}, v{t3}, v{t3}
    v_add_f32 v{t2}, -1.0, v{lr}
    v_mul_f32 v{cr}, v{t2}, v{t0}
    v_fmac_f32 v{cr}, v{li}, v{t1}
    v_mul_f32 v{nci}, v{t2}, v{t1}
    v_fma_f32 v{nci}, -v{li}, v{t0}, v{nci}
    v_mul_f32 v{cr}, v{cr}, v{t3}
    v_mul_f32 v{nci}, v{nci}, v{t3}
    v_sub_f32 v{ncr}, 0, v{cr}
    v_sub_f32 v{nli}, 0, v{li}
    v_mov_b32 v{m32r}, v{lr}
    v_mov_b32 v{m32i}, v{li}
    """)
    for _ in range(5):
        csq(a, m32r, m32i, t0)
    a(f"v_mov_b32 v{m128r}, v{m32r}")
    a(f"v_mov_b32 v{m128i}, v{m32i}")
    for _ in range(2):
        csq(a, m128r, m128i, t0)

    def uA(b, mt):
        return fr + 16 * b + 4 * mt

    def uB(b, c):
        return fr + 16 * b + 8 + 4 * c

    def uacc(mt, c):
        return accU + 32 * mt + 16 * c

    def u_reads(b, slot, ks):
        return [lambda: a.rd128(uA(b, 0), vA + ks, slot * 16384),
                lambda: a.rd128(uB(b, 0), vB + ks, slot * 16384),
                lambda: a.rd128(uB(b, 1), vB + ks, slot * 16384 + 4096),
                lambda: a.rd128(uA(b, 1), vA + ks, slot * 16384 + 4096)]

    a("s_barrier")
    for r in u_reads(0, 0, 0):
        r()
    a("s_mov_b32 s80, 4")
    a(".p2align 3")
    a("L_k1_uloop:")
    for slot in range(4):
        for ks in range(4):
            b = ks & 1
            a.wait(lgkm=0)
            if ks == 3:
                a("s_barrier")
                rd = u_reads(b ^ 1, (slot + 1) & 3, 0)
            else:
                a("s_nop 0")
                rd = u_reads(b ^ 1, slot, ks + 1)
            a.mfma(uacc(0, 0), uA(b, 0), uB(b, 0))
            rd[0]()
            rd[1]()
            a.mfma(uacc(0, 1), uA(b, 0), uB(b, 1))
            rd[2]()
            rd[3]()
            a.mfma(uacc(1, 1), uA(b, 1), uB(b, 1))
            a.mfma(uacc(1, 0), uA(b, 1), uB(b, 0))
    a("""
    s_sub_u32 s80, s80, 1
    s_cmp_lg_u32 s80, 0
    s_cbranch_scc1 L_k1_uloop
    """)

    def qX(b, mt, k2):
        return fr + 24 * b + 4 * (2 * k2 + mt)

    def qW(b, k2):
        return fr + 24 * b + 16 + 4 * k2

    def q_reads(b, slot, kp):
        out = []
        for k2 in range(2):
            ks = 2 * kp + k2
            out.append(lambda k2=k2, ks=ks: a.rdtr(qW(b, k2), vW, slot * 16384 + ks * 2048))
            out.append(lambda k2=k2, ks=ks: a.rdtr(qW(b, k2) + 2, vW, slot * 16384 + ks * 2048 + 512))
            out.append(lambda k2=k2, ks=ks: a.rd128(qX(b, 0, k2), vA + ks, slot * 16384))
            out.append(lambda k2=k2, ks=ks: a.rd128(qX(b, 1, k2), vA + ks, slot * 16384 + 4096))
        return out

    a.wait(lgkm=0)
    for r in q_reads(0, 0, 0):
        r()
    a.nop(12)
    a.c("pass 1")
    pp = [(Es, Es + 1), (Es + 2, Es + 3)]
    cur = (uacc(0, 0), uacc(0, 1))
    for i in range(1, 32):
        mt, r = i >> 4, i & 15
        d = pp[(i + 1) & 1]
        cmad(a, d[0], d[1], lr, li, cur[0], cur[1], uacc(mt, 0) + r, uacc(mt, 1) + r)
        cur = d
    assert cur == pp[0]
    a(f"ds_write_b64 v{vEw}, {vr(Es, 2)}")

    cm_list = [(mt, r) for mt in range(2) for r in range(16)]

    def cmul_inplace(ur, ui):
        a(f"""
        v_mul_f32 v{t0}, v{nci}, v{ui}
        v_mul_f32 v{t1}, v{nci}, v{ur}
        v_fma_f32 v{ur}, v{cr}, v{ur}, v{t0}
        v_fma_f32 v{ui}, v{ncr}, v{ui}, v{t1}
        """)

    for st in range(16):
        slot = st & 3
        for kp in range(2):
            b = kp
            a.wait(lgkm=0)
            rd = []
            if kp == 0:
                rd = q_reads(1, slot, 1)
                rd += [lambda: a.rd128(fkx, vKX, slot * 16384),
                       lambda: a.rdtr(fkw, vKW, slot * 16384),
                       lambda: a.rdtr(fkw + 2, vKW, slot * 16384 + 256)]
            elif st < 15:
                a("s_barrier")
                rd = q_reads(0, (slot + 1) & 3, 0)
                if st == 0:
                    rd += [lambda j=j: a(f"ds_read_b64 {vr(Es + 2 * j, 2)}, v{vEr} offset:{256 * j}") for j in range(4)]
            mf = [(accQ + 16 * mt, qW(b, k2), qX(b, mt, k2)) for k2 in range(2) for mt in range(2)]
            per = (len(rd) + 2) // 3
            for i, m in enumerate(mf):
                a.mfma(*m)
                for r in rd[i * per:(i + 1) * per]:
                    r()
            if kp == 1:
                a(f"""
                s_cmp_eq_u32 s{S_ISV}, 0
                s_cbranch_scc1 L_k1_kk{st}
                """)
                a.mfma(accK, fkx, fkw)
                a(f"s_branch L_k1_kd{st}")
                a(f"L_k1_kk{st}:")
                a.mfma(accK, fkw, fkx)
                a(f"L_k1_kd{st}:")
            mt, r = cm_list[2 * st + kp]
            cmul_inplace(uacc(mt, 0) + r, uacc(mt, 1) + r)
            if (st, kp) == (1, 0):
                a.c("chunk end state -> global")
                cmad(a, ee, ee + 1, m32r, m32i, Es, Es + 1, Es + 2, Es + 3)
                cmad(a, ee + 2, ee + 3, m32r, m32i, ee, ee + 1, Es + 4, Es + 5)
                cmad(a, ee, ee + 1, m32r, m32i, ee + 2, ee + 3, Es + 6, Es + 7)
                a(f"""
                v_add_u32 v{t0}, s{S_WM}, v{vhf}
                v_cmp_eq_u32 vcc, 0, v{t0}
                v_mov_b32 v{t1}, -16
                s_nop 0
                v_cndmask_b32 v{t1}, v{t1}, v{vEst}, vcc
                buffer_store_dwordx2 {vr(ee, 2)}, v{t1}, {sr(SRD_E, 4)}, 0 offen sc1
                """)
            if (st, kp) == (3, 0):
                a(f"""
                s_lshl_b32 s70, s{S_WN}, 4
                s_add_u32 s71, s70, s{S_MB}
                s_lshl_b32 s71, 1, s71
                s_lshl_b32 s72, s{S_NB}, 2
                v_mov_b32 v{vFl}, s72
                v_mov_b32 v{vFlv}, s71
                v_add_u32 v{t0}, s{S_WM}, v0
                v_cmp_eq_u32 vcc, 0, v{t0}
                v_mov_b32 v{t1}, -16
                s_nop 0
                v_cndmask_b32 v{t1}, v{t1}, v{vFl}, vcc
                s_waitcnt vmcnt(0)
                buffer_atomic_or v{vFlv}, v{t1}, {sr(SRD_DBG, 4)}, 0 offen
                s_lshl_b32 s81, 1, s{S_MB}
                s_sub_u32 s81, s81, 1
                s_lshl_b32 s81, s81, s70
                """)
            if (st, kp) == (9, 0):
                a(f"buffer_load_dword v{vFlv}, v{vFl}, {sr(SRD_DBG, 4)}, 0 offen sc1")
            if (st, kp) == (11, 0):
                a(f"""
                s_mov_b32 s82, 0x40000
                L_k1_poll:
                s_waitcnt vmcnt(0)
                v_readfirstlane_b32 s70, v{vFlv}
                s_sub_u32 s82, s82, 1
                s_cbranch_scc1 L_k1_polled
                s_and_b32 s70, s70, s81
                s_cmp_eq_u32 s70, s81
                s_cbranch_scc1 L_k1_polled
                s_sleep 4
                buffer_load_dword v{vFlv}, v{vFl}, {sr(SRD_DBG, 4)}, 0 offen sc1
                s_branch L_k1_poll
                L_k1_polled:
                """)
                for i in range(15):
                    a(f"v_subrev_u32 v{t0}, {hex(8192 * (i + 1))}, v{vEst}")
                    a(f"buffer_load_dwordx2 {vr(ee + 2 * i, 2)}, v{t0}, {sr(SRD_E, 4)}, 0 offen sc1")

    a.c("carry-in Horner")
    a.wait(vm=0)
    hp = [(t2, t3), (vFl, vFlv)]
    cur = (ee + 28, ee + 29)
    for n, i in enumerate(range(13, -1, -1)):
        d = hp[n & 1]
        cmad(a, d[0], d[1], m128r, m128i, cur[0], cur[1], ee + 2 * i, ee + 2 * i + 1)
        cur = d
    a(f"""
    s_lshl_b32 s70, s{S_W}, 12
    s_add_u32 s70, s70, {K1_SCR_KV}
    v_lshl_add_u32 v{t0}, v0, 4, s70
    """)
    for q in range(4):
        a(f"ds_write_b128 v{t0}, {vr(accK + 4 * q, 4)} offset:{1024 * q}")
    for mt in range(2):
        for i in range(8):
            a(f"v_cvt_pk_bf16_f32 v{fr + 8 * mt + i}, v{accQ + 16 * mt + 2 * i}, v{accQ + 16 * mt + 2 * i + 1}")
    a(f"""
    s_lshl_b32 s70, s{S_MB}, 4
    s_add_u32 s70, s70, s{S_NB}
    s_lshl_b32 s70, s70, 2
    s_add_u32 s70, s70, s{S_W}
    s_lshl_b32 s70, s70, 12
    v_lshlrev_b32 v{t1}, 4, v0
    """)
    for i in range(4):
        a(f"buffer_store_dwordx4 {vr(fr + 4 * i, 4)}, v{t1}, {sr(SRD_WS, 4)}, s70 offen offset:{1024 * i}")
    a.wait(lgkm=0)
    a("s_barrier")
    a(f"""
    s_lshl_b32 s70, s{S_W}, 10
    s_add_u32 s70, s70, {K1_SCR_KV}
    v_lshl_add_u32 v{t0}, v0, 4, s70
    """)
    for q in range(4):
        a.rd128(accK + 4 * q, t0, 4096 * q)
    a(f"""
    s_lshl_b32 s70, s{S_WM}, 1
    v_add_u32 v{t0}, s70, v{vhf}
    """)
    oth = hp[0] if cur == hp[1] else hp[1]
    for j in range(3):
        a(f"v_cmp_lt_u32 vcc, {j}, v{t0}")
        cmad(a, oth[0], oth[1], m32r, m32i, cur[0], cur[1], Es + 2 * j, Es + 2 * j + 1)
        a(f"v_cndmask_b32 v{cur[0]}, v{cur[0]}, v{oth[0]}, vcc")
        a(f"v_cndmask_b32 v{cur[1]}, v{cur[1]}, v{oth[1]}, vcc")
    cmul_inplace(cur[0], cur[1])
    a.wait(lgkm=0)
    for i in range(4):
        a(f"v_add_f32 v{accK + i}, v{accK + i}, v{accK + 4 + i}")
        a(f"v_add_f32 v{accK + 8 + i}, v{accK + 8 + i}, v{accK + 12 + i}")
    a(f"""
    s_cmp_eq_u32 s{S_ISV}, 0
    s_cselect_b32 s71, {f32(KSCALE)}, 1.0
    """)
    for i in range(4):
        a(f"v_add_f32 v{accK + i}, v{accK + i}, v{accK + 8 + i}")
        a(f"v_mul_f32 v{accK + i}, s71, v{accK + i}")
    a(f"""
    v_cvt_pk_bf16_f32 v{accK + 4}, v{accK}, v{accK + 1}
    v_cvt_pk_bf16_f32 v{accK + 5}, v{accK + 2}, v{accK + 3}
    s_lshl_b32 s70, s{S_MB}, 2
    s_add_u32 s70, s70, s{S_TS}
    s_lshl_b32 s70, s70, 1
    s_add_u32 s70, s70, s{S_ISV}
    s_lshl_b32 s70, s70, 1
    s_add_u32 s70, s70, s{S_WN}
    s_lshl_b32 s70, s70, 7
    s_add_u32 s70, s70, s{S_WM}
    s_lshl_b32 s70, s70, 3
    s_add_u32 s70, s70, {hex(WS_KV)}
    v_lshlrev_b32 v{t1}, 4, v0
    s_cmp_ge_u32 s{S_NB}, 8
    s_cbranch_scc1 L_k1_nokv
    buffer_store_dwordx2 {vr(accK + 4, 2)}, v{t1}, {sr(SRD_WS, 4)}, s70 offen
    L_k1_nokv:
    """)
    vTw, vTr = vA, vB
    a(f"""
    v_and_b32 v{t0}, 1, v{vn}
    v_bfe_u32 v{t1}, v{vn}, 1, 1
    v_xor_b32 v{t1}, v{t1}, v{vhf}
    v_lshl_add_u32 v{t0}, v{t1}, 2, v{t0}
    v_bfe_u32 v{t1}, v{vn}, 2, 1
    v_lshl_add_u32 v{t0}, v{t1}, 1, v{t0}
    v_lshlrev_b32 v{t0}, 4, v{t0}
    v_lshl_add_u32 v{t0}, v{vn}, 7, v{t0}
    s_lshl_b32 s70, s{S_W}, 13
    v_add_u32 v{t0}, s70, v{t0}
    """)
    for q in range(4):
        a(f"v_xor_b32 v{vTw + q}, {16 * q}, v{t0}")
    a(f"""
    v_bfe_u32 v{t0}, v0, 1, 1
    v_bfe_u32 v{t1}, v0, 2, 1
    v_xor_b32 v{t0}, v{t0}, v{t1}
    v_bfe_u32 v{t1}, v0, 4, 1
    v_lshl_add_u32 v{t0}, v{t1}, 1, v{t0}
    v_bfe_u32 v{t1}, v0, 3, 1
    v_lshl_add_u32 v{t0}, v{t1}, 2, v{t0}
    v_lshlrev_b32 v{t0}, 4, v{t0}
    v_and_b32 v{t1}, 1, v0
    v_lshl_add_u32 v{t0}, v{t1}, 3, v{t0}
    v_bfe_u32 v{t1}, v0, 2, 2
    v_lshl_add_u32 v{t0}, v{t1}, 7, v{t0}
    v_lshl_add_u32 v{t0}, v{vhf}, 10, v{t0}
    v_add_u32 v{t0}, s70, v{t0}
    """)
    for tt in range(2):
        for half in range(2):
            a(f"v_xor_b32 v{vTr + 2 * tt + half}, {64 * tt + 32 * half}, v{t0}")
    a.c("pass 2")
    pk = fr
    for i in range(32):
        mt, r = i >> 4, i & 15
        ur, ui = uacc(mt, 0) + r, uacc(mt, 1) + r
        a(f"""
        v_fmac_f32 v{ur}, v{lr}, v{cur[0]}
        v_fmac_f32 v{ui}, v{lr}, v{cur[1]}
        v_fmac_f32 v{ur}, v{li}, v{cur[1]}
        v_fmac_f32 v{ui}, v{nli}, v{cur[0]}
        """)
        if i & 1:
            a(f"v_cvt_pk_bf16_f32 v{pk + (i >> 1)}, v{cur[0]}, v{ur}")
            a(f"v_cvt_pk_bf16_f32 v{pk + 16 + (i >> 1)}, v{cur[1]}, v{ui}")
        if i & 7 == 7:
            q = i >> 3
            a(f"ds_write_b128 v{vTw + q}, {vr(pk + 4 * q, 4)}")
            a(f"ds_write_b128 v{vTw + q}, {vr(pk + 16 + 4 * q, 4)} offset:4096")
        cur = (ur, ui)
    a.wait(lgkm=0)
    for tt in range(2):
        for kk in range(4):
            for half in range(2):
                a.rdtr(accU + 16 * tt + 4 * kk + 2 * half, vTr + 2 * tt + half, kk * 2048 + half * 512)
        if tt == 0:
            a(f"""
            s_lshl_b32 s70, s{S_MB}, 1
            s_add_u32 s70, s70, s{S_WM}
            s_lshl_b32 s70, s70, 8
            s_lshl_b32 s71, s{S_NB}, 3
            s_add_u32 s70, s70, s71
            s_lshl_b32 s71, s{S_WN}, 1
            s_add_u32 s70, s70, s71
            s_lshl_b32 s70, s70, 10
            s_add_u32 s70, s70, {hex(WS_H)}
            s_add_u32 s71, s70, 0x1000
            s_add_u32 s72, s70, 0x20000
            s_add_u32 s73, s70, 0x21000
            v_lshlrev_b32 v{t1}, 4, v0
            """)
            a.wait(lgkm=0)
    for tt in range(2):
        if tt == 1:
            a.wait(lgkm=0)
        for kk in range(4):
            a(f"buffer_store_dwordx4 {vr(accU + 16 * tt + 4 * kk, 4)}, v{t1}, {sr(SRD_WS, 4)}, s{70 + 2 * tt + (kk >> 1)} offen offset:{1024 * (kk & 1)}")
    a("s_endpgm")

    a("L_k1_loader:")
    SX, SB, SXB, SW, SKW = 8, 12, 16, 20, 24
    S_LW, S_SLOT, S_KO, S_M0A, S_CNT, S_KW, S_KK = 76, 77, 78, 79, 80, 81, 82
    la, lb, lx, lw_, lk = 4, 8, 12, 16, 18
    u0, u1, u2, u3 = 20, 21, 22, 23
    a(f"""
    s_sub_u32 s{S_LW}, s{S_W}, 4
    v_lshrrev_b32 v{u0}, 4, v0
    v_and_b32 v{u1}, 7, v0
    v_xor_b32 v{u0}, v{u0}, v{u1}
    v_lshlrev_b32 v{u0}, 4, v{u0}
    v_lshrrev_b32 v{u2}, 3, v0
    v_lshl_add_u32 v{u2}, v{u2}, 11, v{u0}
    v_bfe_u32 v{u3}, v0, 3, 2
    v_lshl_add_u32 v{u3}, v{u3}, 11, v{u0}
    v_lshrrev_b32 v{u0}, 5, v0
    v_lshl_add_u32 v{u3}, v{u0}, 16, v{u3}
    s_lshr_b32 s70, s{S_LW}, 1
    s_and_b32 s71, s{S_LW}, 1
    s_lshl_b32 s72, s{S_MB}, 18
    s_lshl_b32 s73, s70, 17
    s_add_u32 s73, s73, s72
    s_lshl_b32 s74, s71, 15
    s_add_u32 s73, s73, s74
    s_lshl_b32 s74, s{S_NB}, 17
    s_lshl_b32 s75, s70, 16
    s_add_u32 s74, s74, s75
    s_lshl_b32 s75, s{S_LW}, 16
    s_add_u32 s75, s75, s72
    """)
    for i in range(4):
        x = f"v_xor_b32 v{u0}, 64, v{u3}" if i & 1 else f"v_mov_b32 v{u0}, v{u3}"
        y = f"v_xor_b32 v{u1}, 64, v{u2}" if i & 1 else f"v_mov_b32 v{u1}, v{u2}"
        a(f"""
        {x}
        {y}
        v_add_u32 v{u0}, {hex(i * (4 * 2048 - 1024))}, v{u0}
        v_add_u32 v{u1}, {hex(i * (8 * 2048 - 1024))}, v{u1}
        v_add_u32 v{la + i}, s73, v{u0}
        v_add_u32 v{lb + i}, s74, v{u1}
        v_add_u32 v{lx + i}, s75, v{u1}
        """)
    a(f"""
    v_bfe_u32 v{u0}, v0, 4, 1
    v_lshlrev_b32 v{u0}, 2, v{u0}
    v_and_b32 v{u1}, 7, v0
    v_xor_b32 v{u0}, v{u0}, v{u1}
    v_lshlrev_b32 v{u0}, 4, v{u0}
    v_lshrrev_b32 v{u1}, 3, v0
    v_lshl_add_u32 v{u0}, v{u1}, 11, v{u0}
    s_lshl_b32 s72, s{S_LW}, 15
    s_lshl_b32 s73, s{S_NB}, 7
    s_add_u32 s72, s72, s73
    v_add_u32 v{lw_}, s72, v{u0}
    v_add_u32 v{lw_ + 1}, {hex(8 * 2048 - 1024)}, v{lw_}
    s_lshl_b32 s72, s{S_LW}, 10
    v_lshl_add_u32 v{lk}, v0, 4, s72
    s_waitcnt lgkmcnt(0)
    """)
    a.srd(SX, P_XA, 4 << 20)
    a(f"s_cmp_eq_u32 s71, 0")
    a.srd_sel(SB, P_BRE, P_BIM, 2 << 20)
    a.srd(SXB, P_XB, 4 << 20)
    a.srd(SW, P_WQ, 2 << 20)
    a(f"s_bitcmp0_b32 s{S_NB}, 2")
    a.srd_sel(SKW, P_WK, P_WV, 64 << 10)
    a(f"""
    s_lshl_b32 s{S_KO}, s{S_K0}, 7
    s_lshl_b32 s{S_M0A}, s{S_LW}, 12
    s_mov_b32 s{S_SLOT}, 0
    """)

    def adv():
        a(f"""
        s_add_u32 s{S_KO}, s{S_KO}, 128
        s_and_b32 s{S_KO}, s{S_KO}, 2047
        s_add_u32 s{S_SLOT}, s{S_SLOT}, 0x4000
        s_and_b32 s{S_SLOT}, s{S_SLOT}, 0xffff
        """)

    def issue_u():
        a(f"s_add_u32 m0, s{S_SLOT}, s{S_M0A}")
        a("s_nop 0")
        for i in range(4):
            a.dma(la + i, SX, f"s{S_KO}", 1024 * i)
        a(f"s_add_u32 m0, m0, 0x10000")
        a("s_nop 0")
        for i in range(4):
            a.dma(lb + i, SB, f"s{S_KO}", 1024 * i)
        adv()

    def issue_q():
        a(f"""
        s_add_u32 m0, s{S_SLOT}, s{S_M0A}
        s_lshl_b32 s{S_KW}, s{S_KO}, 10
        """)
        for i in range(4):
            a.dma(lx + i, SXB, f"s{S_KO}", 1024 * i)
        a(f"""
        s_lshl_b32 s70, s{S_LW}, 11
        s_add_u32 s70, s70, s{S_SLOT}
        s_add_u32 m0, s70, 0x10000
        s_lshl_b32 s{S_KK}, s{S_KO}, 5
        """)
        for i in range(2):
            a.dma(lw_ + i, SW, f"s{S_KW}", 1024 * i)
        a(f"""
        s_lshl_b32 s70, s{S_LW}, 10
        s_add_u32 s70, s70, s{S_SLOT}
        s_add_u32 m0, s70, 0x12000
        s_nop 0
        """)
        a.dma(lk, SKW, f"s{S_KK}")
        adv()

    a(f"s_mov_b32 s{S_CNT}, 4")
    a("L_k1_l0:")
    issue_u()
    a(f"""
    s_sub_u32 s{S_CNT}, s{S_CNT}, 1
    s_cmp_lg_u32 s{S_CNT}, 0
    s_cbranch_scc1 L_k1_l0
    s_waitcnt vmcnt(24)
    s_barrier
    s_mov_b32 s{S_CNT}, 12
    L_k1_l1:
    s_waitcnt vmcnt(16)
    s_barrier
    """)
    issue_u()
    a(f"""
    s_sub_u32 s{S_CNT}, s{S_CNT}, 1
    s_cmp_lg_u32 s{S_CNT}, 0
    s_cbranch_scc1 L_k1_l1
    s_mov_b32 s{S_CNT}, 16
    L_k1_l2:
    s_waitcnt vmcnt(14)
    s_barrier
    """)
    issue_q()
    a(f"""
    s_sub_u32 s{S_CNT}, s{S_CNT}, 1
    s_cmp_lg_u32 s{S_CNT}, 0
    s_cbranch_scc1 L_k1_l2
    s_waitcnt vmcnt(14)
    s_barrier
    s_waitcnt vmcnt(7)
    s_barrier
    s_waitcnt vmcnt(0)
    s_barrier
    L_k1_end:
    s_endpgm
    """)
    return a.text(), v.hi


K2_LDS = 128 * 1024


def gen_k2():
    a = Asm()
    prologue(a, "k2")
    v = Alloc(1, 256)
    vL16, vRd, vRb, vIdx, t0, t1, t2, t3 = (v.get() for _ in range(8))
    Q = v.get(16, 4)
    O = v.get(32, 4)
    L = v.get(8, 4)
    S = v.get(32, 4)
    P = v.get(16, 4)
    KF = v.get(16, 4)
    VF = v.get(16, 4)
    ONE = v.get(4, 4)
    SRD_WS = 8
    S_KH, S_QP, S_G, S_M0, S_SLOT, S_CNT, S_LD = 76, 77, 78, 79, 80, 81, 82
    a(f"""
    s_lshr_b32 s{S_KH}, s{S_W}, 2
    s_and_b32 s{S_QP}, s{S_W}, 3
    v_lshlrev_b32 v{vL16}, 4, v0
    s_lshl_b32 s70, s{S_MB}, 4
    s_add_u32 s70, s70, s{S_NB}
    s_lshl_b32 s70, s70, 2
    s_add_u32 s70, s70, s{S_QP}
    s_lshl_b32 s70, s70, 12
    s_lshl_b32 s{S_G}, s{S_KH}, 17
    s_lshl_b32 s71, s{S_QP}, 12
    s_add_u32 s{S_G}, s{S_G}, s71
    s_add_u32 s{S_G}, s{S_G}, {hex(WS_KV)}
    s_lshl_b32 s{S_M0}, s{S_KH}, 16
    v_add_u32 v{vRb}, s{S_M0}, v{vL16}
    s_add_u32 s{S_M0}, s{S_M0}, s71
    s_waitcnt lgkmcnt(0)
    """)
    a.srd(SRD_WS, P_WS, WS_SIZE)
    for i in range(4):
        a(f"buffer_load_dwordx4 {vr(Q + 4 * i, 4)}, v{vL16}, {sr(SRD_WS, 4)}, s70 offen offset:{1024 * i}")
    for s in range(4):
        a(f"s_add_u32 m0, s{S_M0}, {hex(s * 16384)}")
        a("s_nop 0")
        for i in range(4):
            a.dma(vL16, SRD_WS, f"s{S_G}", 1024 * i)
        a(f"s_add_u32 s{S_G}, s{S_G}, 0x4000")
    a(f"""
    v_bfe_u32 v{t0}, v0, 2, 1
    v_cmp_eq_u32 vcc, 0, v{t0}
    v_mov_b32 v{t1}, 0x3f803f80
    v_and_b32 v{t2}, 1, v0
    v_cndmask_b32 v{ONE}, 0, v{t1}, vcc
    v_cndmask_b32 v{ONE + 1}, 0, v{t1}, vcc
    v_xor_b32 v{ONE + 2}, v{t1}, v{ONE}
    v_xor_b32 v{ONE + 3}, v{t1}, v{ONE}
    v_cmp_eq_u32 vcc, 0, v{t2}
    v_mov_b32 v{t0}, 0xeeeeeeee
    v_mov_b32 v{t1}, 0x44444444
    v_cndmask_b32 v{vIdx}, v{t0}, v{t1}, vcc
    v_mov_b32 v{vRd}, v{vRb}
    """)
    for i in range(32):
        a(f"v_mov_b32 v{O + i}, 0")
    for i in range(8):
        a(f"v_mov_b32 v{L + i}, 0")

    def Kf(j, m):
        return KF + 8 * (j & 1) + 4 * m

    def Vf(j, m):
        return VF + 8 * (j & 1) + 4 * m

    def step(t, j, rd=None, pv=True, qk=True, ex=True, misc=None, endwait=True):
        o = t ^ 1
        jq = j + t
        jv = j - (1 - t)
        misc = misc or [[], [], []]
        rd = rd or [None, None]

        def E(i):
            if ex:
                a(f"v_exp_f32 v{S + 16 * t + i}, v{S + 16 * t + i}")

        def C(i):
            if ex:
                a(f"v_cvt_pk_bf16_f32 v{P + 8 * t + i}, v{S + 16 * t + 2 * i}, v{S + 16 * t + 2 * i + 1}")

        if pv:
            a.mfma(O + 16 * o, Vf(jv, 0), P + 8 * o)
        if rd[0]:
            rd[0]()
        if pv:
            a(f"v_cvt_pk_bf16_f32 v{P + 8 * o + 7}, v{S + 16 * o + 14}, v{S + 16 * o + 15}")
        E(0), E(1), E(2)
        if qk:
            a.mfma(S + 16 * o, Kf(jq, 0), Q + 8 * o, "0")
        if rd[1]:
            rd[1]()
        C(0), E(3), E(4), C(1), E(5)
        if qk:
            a.mfma(S + 16 * o, Kf(jq, 1), Q + 8 * o + 4)
        elif ex:
            a("s_nop 0")
        for m in misc[0]:
            m()
        C(2), E(6), E(7), E(8)
        if pv:
            if not ex:
                a.nop(2)
            a.mfma(O + 16 * o, Vf(jv, 1), P + 8 * o + 4)
        for m in misc[1]:
            m()
        C(3), E(9), E(10), C(4), E(11)
        if pv:
            a(f"v_smfmac_f32_16x16x64_bf16 {vr(L + 4 * o, 4)}, {vr(ONE, 4)}, {vr(P + 8 * o, 8)}, v{vIdx}")
        elif ex:
            a("s_nop 0")
        for m in misc[2]:
            m()
        if endwait:
            a.wait(lgkm=0)
        C(5), E(12), E(13), E(14), C(6), E(15)

    def rdK(jl, jpar):
        return [lambda m=m: a.rd128(Kf(jpar, m), vRd, jl * 4096 + m * 1024) for m in range(2)]

    def rdV(jl, jpar):
        return [lambda m=m: a.rd128(Vf(jpar, m), vRd, jl * 4096 + 2048 + m * 1024) for m in range(2)]

    a.wait(vm=12)
    a("s_barrier")
    for r in rdK(0, 0) + rdV(0, 0):
        r()
    a.wait(lgkm=2)
    a.mfma(S, Kf(0, 0), Q, "0")
    a.mfma(S, Kf(0, 1), Q + 4)
    a.nop(12)
    for j in range(3):
        step(0, j, rdK(j + 1, j + 1), pv=(j > 0))
        step(1, j, rdV(j + 1, j + 1))
    a(f"""
    s_mov_b32 s{S_SLOT}, 0
    s_mov_b32 s{S_CNT}, 1
    .p2align 3
    L_k2_loop:
    s_cmp_ge_u32 s{S_CNT}, 6
    s_cbranch_scc1 L_k2_w0
    s_waitcnt vmcnt(8)
    s_branch L_k2_w1
    L_k2_w0:
    s_waitcnt vmcnt(0)
    L_k2_w1:
    s_barrier
    s_add_u32 m0, s{S_M0}, s{S_SLOT}
    s_add_u32 s{S_SLOT}, s{S_SLOT}, 0x4000
    s_and_b32 s{S_SLOT}, s{S_SLOT}, 0xffff
    v_add_u32 v{vRd}, s{S_SLOT}, v{vRb}
    s_cmp_ge_u32 s{S_CNT}, 5
    s_cbranch_scc1 L_k2_nold
    """)
    for i in range(4):
        a.dma(vL16, SRD_WS, f"s{S_G}", 1024 * i)
    a(f"""
    s_add_u32 s{S_G}, s{S_G}, 0x4000
    L_k2_nold:
    """)
    for jj in range(4):
        j = 3 + jj
        step(0, j, rdK(jj, j + 1))
        step(1, j, rdV(jj, j + 1))
    a(f"""
    s_add_u32 s{S_CNT}, s{S_CNT}, 1
    s_cmp_lt_u32 s{S_CNT}, 8
    s_cbranch_scc1 L_k2_loop
    """)
    step(0, 31, endwait=False)
    step(1, 31, qk=False, endwait=False)
    a("s_nop 0")
    step(0, 32, qk=False, ex=False, endwait=False)
    a("s_barrier")
    a(f"""
    s_lshl_b32 s70, s{S_W}, 13
    v_add_u32 v{t0}, s70, v{vL16}
    s_xor_b32 s70, s70, 0x8000
    v_add_u32 v{t1}, s70, v{vL16}
    s_nop 7
    v_add_f32 v{L}, v{L}, v{L + 1}
    v_add_f32 v{L + 4}, v{L + 4}, v{L + 5}
    s_cmp_eq_u32 s{S_KH}, 0
    s_cbranch_scc1 L_k2_kh0
    """)
    for i in range(16):
        a(f"v_swap_b32 v{O + i}, v{O + 16 + i}")
    a(f"v_swap_b32 v{L}, v{L + 4}")
    for i in range(8):
        a(f"v_mov_b32 v{Q + i}, v{Q + 8 + i}")
    a("L_k2_kh0:")
    for q in range(4):
        a(f"ds_write_b128 v{t0}, {vr(O + 16 + 4 * q, 4)} offset:{1024 * q}")
    a(f"ds_write_b32 v{t0}, v{L + 4} offset:4096")
    a.wait(lgkm=0)
    a("s_barrier")
    for q in range(4):
        a.rd128(O + 16 + 4 * q, t1, 1024 * q)
    a(f"ds_read_b32 v{L + 4}, v{t1} offset:4096")
    a(f"""
    s_lshl_b32 s70, s{S_MB}, 1
    s_and_b32 s71, s{S_QP}, 1
    s_add_u32 s70, s70, s71
    s_lshl_b32 s70, s70, 1
    s_add_u32 s70, s70, s{S_KH}
    s_lshl_b32 s70, s70, 5
    s_lshl_b32 s71, s{S_NB}, 1
    s_add_u32 s70, s70, s71
    s_lshr_b32 s71, s{S_QP}, 1
    s_add_u32 s70, s70, s71
    s_lshl_b32 s70, s70, 11
    s_add_u32 s83, s70, {hex(WS_O)}
    v_mov_b32 v{t2}, 0
    """)
    a.wait(lgkm=0)
    a(f"v_add_f32 v{L}, v{L}, v{L + 4}")
    for i in range(16):
        a(f"v_add_f32 v{O + i}, v{O + i}, v{O + 16 + i}")
        a(f"v_fmac_f32 v{t2}, 0, v{O + i}")
    a.c("was exp without max subtraction safe?  2^-30 <= l <= 2^60 and o finite, else redo with the true row max")
    a(f"""
    v_cmp_le_f32 vcc, {f32(2.0 ** -30)}, v{L}
    s_mov_b64 s[72:73], vcc
    v_cmp_ge_f32 vcc, {f32(2.0 ** 60)}, v{L}
    s_and_b64 s[72:73], s[72:73], vcc
    v_cmp_eq_f32 vcc, 0, v{t2}
    s_and_b64 s[72:73], s[72:73], vcc
    s_cmp_eq_u64 s[72:73], exec
    s_cbranch_scc0 L_k2_slow
    L_k2_fin:
    v_rcp_f32 v{t0}, v{L}
    s_nop 0
    """)
    for i in range(16):
        a(f"v_mul_f32 v{O + i}, v{O + i}, v{t0}")
    for i in range(8):
        a(f"v_cvt_pk_bf16_f32 v{P + i}, v{O + 2 * i}, v{O + 2 * i + 1}")
    for m in range(2):
        a(f"buffer_store_dwordx4 {vr(P + 4 * m, 4)}, v{vL16}, {sr(SRD_WS, 4)}, s83 offen offset:{1024 * m}")
    a("L_k2_end:")
    a("s_endpgm")
    NM = S + 16
    a(f"""
    L_k2_slow:
    s_mov_b32 s70, {hex(WS_KV)}
    v_mov_b32 v{t3}, 0xff800000
    L_k2_smax:
    buffer_load_dwordx4 {vr(KF, 4)}, v{vL16}, {sr(SRD_WS, 4)}, s70 offen
    buffer_load_dwordx4 {vr(KF + 4, 4)}, v{vL16}, {sr(SRD_WS, 4)}, s70 offen offset:1024
    s_waitcnt vmcnt(0)
    """)
    a.mfma(S, KF, Q, "0")
    a.mfma(S, KF + 4, Q + 4)
    a.nop(16)
    for i in range(8):
        a(f"v_max3_f32 v{t3}, v{S + 2 * i}, v{S + 2 * i + 1}, v{t3}")
    a(f"""
    s_add_u32 s70, s70, 0x1000
    s_cmp_lt_u32 s70, {hex(WS_KV + 64 * 4096)}
    s_cbranch_scc1 L_k2_smax
    v_mov_b32 v{t2}, v{t3}
    s_nop 1
    v_permlane32_swap_b32 v{t2}, v{t3}
    s_nop 1
    v_max_f32 v{t3}, v{t2}, v{t3}
    """)
    for i in range(16):
        a(f"v_sub_f32 v{NM + i}, 0, v{t3}")
        a(f"v_mov_b32 v{O + i}, 0")
    for i in range(4):
        a(f"v_mov_b32 v{L + i}, 0")
    a(f"""
    s_mov_b32 s70, {hex(WS_KV)}
    L_k2_sloop:
    buffer_load_dwordx4 {vr(KF, 4)}, v{vL16}, {sr(SRD_WS, 4)}, s70 offen
    buffer_load_dwordx4 {vr(KF + 4, 4)}, v{vL16}, {sr(SRD_WS, 4)}, s70 offen offset:1024
    buffer_load_dwordx4 {vr(VF, 4)}, v{vL16}, {sr(SRD_WS, 4)}, s70 offen offset:2048
    buffer_load_dwordx4 {vr(VF + 4, 4)}, v{vL16}, {sr(SRD_WS, 4)}, s70 offen offset:3072
    s_waitcnt vmcnt(0)
    """)
    a.mfma(S, KF, Q, NM)
    a.mfma(S, KF + 4, Q + 4)
    a.nop(16)
    for i in range(16):
        a(f"v_exp_f32 v{S + i}, v{S + i}")
    a("s_nop 0")
    for i in range(8):
        a(f"v_cvt_pk_bf16_f32 v{P + i}, v{S + 2 * i}, v{S + 2 * i + 1}")
    a.nop(2)
    a.mfma(O, VF, P)
    a.mfma(O, VF + 4, P + 4)
    a(f"v_smfmac_f32_16x16x64_bf16 {vr(L, 4)}, {vr(ONE, 4)}, {vr(P, 8)}, v{vIdx}")
    a(f"""
    s_add_u32 s70, s70, 0x1000
    s_cmp_lt_u32 s70, {hex(WS_KV + 64 * 4096)}
    s_cbranch_scc1 L_k2_sloop
    s_nop 15
    v_add_f32 v{L}, v{L}, v{L + 1}
    s_branch L_k2_fin
    """)
    return a.text(), v.hi


K3_LDS = 96 * 1024


def gen_k3():
    a = Asm()
    prologue(a, "k3")
    a(f"""
    s_cmp_ge_u32 s{S_W}, 4
    s_cbranch_scc1 L_k3_loader
    """)
    v = Alloc(1, 256)
    vn, vhf, t0, t1, t2, t3 = (v.get() for _ in range(6))
    vAl, vW, vOut, vDs = (v.get() for _ in range(4))
    vB = v.get(4)
    vX = v.get(2)
    accY = v.get(32, 4)
    accO = v.get(32, 4)
    fr = v.get(48, 4)
    dg = v.get(8, 4)
    S_WM, S_WN = 76, 77
    SRD_OUT, SRD_T0 = 8, 12
    a(f"""
    s_and_b32 s{S_WM}, s{S_W}, 1
    s_lshr_b32 s{S_WN}, s{S_W}, 1
    v_and_b32 v{vn}, 31, v0
    v_lshrrev_b32 v{vhf}, 5, v0
    s_lshl_b32 s70, s{S_NB}, 6
    s_lshl_b32 s71, s{S_WN}, 5
    s_add_u32 s70, s70, s71
    v_add_u32 v{t0}, s70, v{vn}
    v_lshlrev_b32 v{t1}, 1, v{t0}
    s_waitcnt lgkmcnt(0)
    """)
    a.srd(SRD_T0, P_DSK, 2048)
    a(f"buffer_load_ushort v{vDs}, v{t1}, {sr(SRD_T0, 4)}, 0 offen")
    a.srd(SRD_OUT, P_OUT, 16 << 20)
    a(f"""
    s_lshl_b32 s70, s{S_MB}, 1
    s_add_u32 s70, s70, s{S_WM}
    s_lshl_b32 s70, s70, 19
    v_lshl_add_u32 v{vOut}, v{t0}, 2, s70
    v_lshl_add_u32 v{vOut}, v{vhf}, 15, v{vOut}
    s_lshl_b32 s70, s{S_WM}, 13
    v_lshl_add_u32 v{vAl}, v0, 4, s70
    s_lshl_b32 s71, s{S_WN}, 12
    """)
    row_frag_addrs(a, vB, 4, vn, vhf, t0, 71, 0x10000)
    a(f"""
    s_lshl_b32 s71, s{S_WN}, 6
    v_xor_b32 v{vX}, s71, v{t0}
    v_add_u32 v{vX}, s70, v{vX}
    v_xor_b32 v{vX + 1}, 32, v{vX}
    v_bfe_u32 v{t0}, v0, 2, 2
    v_lshl_add_u32 v{t1}, v{vhf}, 2, v{t0}
    v_bfe_u32 v{t2}, v0, 4, 1
    v_and_b32 v{t3}, 3, v0
    v_lshlrev_b32 v{t3}, 3, v{t3}
    v_lshl_add_u32 v{t3}, v{t2}, 5, v{t3}
    v_add_u32 v{t3}, s71, v{t3}
    v_lshrrev_b32 v{t0}, 1, v{t0}
    v_lshlrev_b32 v{t0}, 6, v{t0}
    v_xor_b32 v{t3}, v{t3}, v{t0}
    v_lshl_add_u32 v{vW}, v{t1}, 7, v{t3}
    v_add_u32 v{vW}, 0x10000, v{vW}
    """)
    for i in range(32):
        a(f"v_mov_b32 v{accO + i}, 0")
    a(f"""
    v_and_b32 v{t0}, 1, v{vn}
    v_lshlrev_b32 v{t0}, 4, v{t0}
    v_lshrrev_b32 v{t1}, 1, v{vn}
    v_lshlrev_b32 v{t2}, 2, v{vhf}
    v_sub_u32 v{t1}, v{t1}, v{t2}
    s_waitcnt vmcnt(0)
    v_lshlrev_b32 v{vDs}, v{t0}, v{vDs}
    """)
    for kk in range(2):
        for q in range(4):
            a(f"v_cmp_eq_u32 vcc, {8 * kk + q}, v{t1}")
            a("s_nop 1")
            a(f"v_cndmask_b32 v{dg + 4 * kk + q}, 0, v{vDs}, vcc")

    def fA(b, mt, k2):
        return fr + 24 * b + 4 * (2 * k2 + mt)

    def fB(b, k2):
        return fr + 24 * b + 16 + 4 * k2

    def y_reads(b, slot, kp):
        out = []
        for k2 in range(2):
            ks = 2 * kp + k2
            out.append(lambda k2=k2, ks=ks: a.rd128(fB(b, k2), vB + ks, slot * 8192))
            out.append(lambda k2=k2, ks=ks: a.rd128(fA(b, 0, k2), vAl, slot * 16384 + ks * 1024))
            out.append(lambda k2=k2, ks=ks: a.rd128(fA(b, 1, k2), vAl, slot * 16384 + 4096 + ks * 1024))
        return out

    def o_reads(b, slot, kp):
        out = []
        for k2 in range(2):
            ks = 2 * kp + k2
            out.append(lambda k2=k2, ks=ks: a.rdtr(fB(b, k2), vW, slot * 8192 + ks * 2048))
            out.append(lambda k2=k2, ks=ks: a.rdtr(fB(b, k2) + 2, vW, slot * 8192 + ks * 2048 + 1024))
            out.append(lambda k2=k2, ks=ks: a.rd128(fA(b, 0, k2), vAl, slot * 16384 + ks * 1024))
            out.append(lambda k2=k2, ks=ks: a.rd128(fA(b, 1, k2), vAl, slot * 16384 + 4096 + ks * 1024))
        return out

    def job_loop(tag, acc, reads, slot0, iters):
        a(f"s_mov_b32 s80, {iters}")
        a(".p2align 3")
        a(f"L_k3_{tag}:")
        for s in range(4):
            slot = (slot0 + s) & 3
            for kp in range(2):
                a.wait(lgkm=0)
                if kp == 0:
                    a("s_nop 0")
                    rd = reads(1, slot, 1)
                else:
                    a("s_barrier")
                    rd = reads(0, (slot + 1) & 3, 0)
                mf = [(acc + 16 * mt, fA(kp, mt, k2), fB(kp, k2)) for k2 in range(2) for mt in range(2)]
                per = (len(rd) + 2) // 3
                for i, m in enumerate(mf):
                    a.mfma(*m)
                    for r in rd[i * per:(i + 1) * per]:
                        r()
        a(f"""
        s_sub_u32 s80, s80, 1
        s_cmp_lg_u32 s80, 0
        s_cbranch_scc1 L_k3_{tag}
        """)

    def store_acc(acc, coloff):
        for mt in range(2):
            for r in range(16):
                row = 32 * mt + 8 * (r >> 2) + (r & 3)
                a(f"s_mov_b32 s70, {hex(row * 8192 + coloff)}")
                a(f"buffer_store_dword v{acc + 16 * mt + r}, v{vOut}, {sr(SRD_OUT, 4)}, s70 offen")

    a("s_barrier")
    for kk in range(2):
        for mt in range(2):
            a.rd128(fA(1, mt, kk), vX + kk, mt * 4096)
    a.wait(lgkm=0)
    a("s_barrier")
    for r in y_reads(0, 1, 0):
        r()
    for kk in range(2):
        for mt in range(2):
            a.mfma(accY + 16 * mt, fA(1, mt, kk), dg + 4 * kk, "0" if kk == 0 else None)
    job_loop("y", accY, y_reads, 1, 8)
    a.wait(lgkm=0)
    for r in o_reads(0, 1, 0):
        r()
    a.nop(12)
    store_acc(accY, 0)
    job_loop("o", accO, o_reads, 1, 4)
    a.nop(16)
    store_acc(accO, 4096)
    a("s_endpgm")

    a("L_k3_loader:")
    SWS, SCR, SCI, SX, SWO = 8, 12, 16, 20, 24
    S_LW, S_SLOT, S_K, S_M0A, S_M0B, S_CNT, S_HB, S_OB = 76, 77, 78, 79, 80, 81, 82, 83
    l16, lc, lx, lw_ = 2, 4, 8, 12
    u0, u1, u2 = 20, 21, 22
    a(f"""
    s_sub_u32 s{S_LW}, s{S_W}, 4
    v_lshlrev_b32 v{l16}, 4, v0
    v_lshrrev_b32 v{u0}, 4, v0
    v_and_b32 v{u1}, 7, v0
    v_xor_b32 v{u0}, v{u0}, v{u1}
    v_lshlrev_b32 v{u0}, 4, v{u0}
    v_lshrrev_b32 v{u2}, 3, v0
    v_lshl_add_u32 v{u2}, v{u2}, 11, v{u0}
    s_lshl_b32 s72, s{S_MB}, 18
    s_lshl_b32 s73, s{S_LW}, 16
    s_add_u32 s72, s72, s73
    s_lshl_b32 s73, s{S_NB}, 7
    s_add_u32 s72, s72, s73
    s_lshl_b32 s74, s{S_NB}, 17
    s_lshl_b32 s75, s{S_LW}, 15
    s_add_u32 s74, s74, s75
    """)
    for i in range(4):
        y = f"v_xor_b32 v{u1}, 64, v{u2}" if i & 1 else f"v_mov_b32 v{u1}, v{u2}"
        a(f"""
        {y}
        v_add_u32 v{u1}, {hex(i * (8 * 2048 - 1024))}, v{u1}
        v_add_u32 v{lx + i}, s72, v{u1}
        """)
        if i < 2:
            a(f"v_add_u32 v{lc + i}, s74, v{u1}")
    a(f"""
    v_bfe_u32 v{u0}, v0, 4, 1
    v_lshlrev_b32 v{u0}, 2, v{u0}
    v_and_b32 v{u1}, 7, v0
    v_xor_b32 v{u0}, v{u0}, v{u1}
    v_lshlrev_b32 v{u0}, 4, v{u0}
    v_lshrrev_b32 v{u1}, 3, v0
    v_lshl_add_u32 v{u0}, v{u1}, 11, v{u0}
    s_add_u32 s75, s75, s73
    v_add_u32 v{lw_}, s75, v{u0}
    v_add_u32 v{lw_ + 1}, {hex(8 * 2048 - 1024)}, v{lw_}
    s_lshl_b32 s70, s{S_MB}, 2
    s_add_u32 s70, s70, s{S_LW}
    s_lshl_b32 s{S_HB}, s70, 17
    s_add_u32 s{S_HB}, s{S_HB}, {hex(WS_H)}
    s_lshl_b32 s{S_OB}, s70, 16
    s_add_u32 s{S_OB}, s{S_OB}, {hex(WS_O)}
    s_lshl_b32 s{S_M0A}, s{S_LW}, 12
    s_lshl_b32 s{S_M0B}, s{S_LW}, 11
    s_add_u32 s{S_M0B}, s{S_M0B}, 0x10000
    s_mov_b32 s{S_K}, s{S_K0}
    s_waitcnt lgkmcnt(0)
    """)
    a.srd(SWS, P_WS, WS_SIZE)
    a.srd(SCR, P_CRE, 2 << 20)
    a.srd(SCI, P_CIM, 2 << 20)
    a.srd(SX, P_XA, 4 << 20)
    a.srd(SWO, P_WO, 2 << 20)

    def slot_adv():
        a(f"""
        s_add_u32 s{S_SLOT}, s{S_SLOT}, 0x4000
        s_and_b32 s{S_SLOT}, s{S_SLOT}, 0xffff
        """)

    def issue(kind):
        a(f"s_add_u32 m0, s{S_SLOT}, s{S_M0A}")
        if kind < 2:
            a(f"""
            s_lshl_b32 s70, s{S_K}, 13
            s_add_u32 s70, s70, s{S_HB}
            s_lshl_b32 s71, s{S_K}, 7
            """)
            if kind == 1:
                a("s_add_u32 s70, s70, 0x1000")
        else:
            a(f"""
            s_lshl_b32 s70, s{S_K}, 12
            s_add_u32 s70, s70, s{S_OB}
            s_lshl_b32 s71, s{S_K}, 17
            """)
        for i in range(4):
            a.dma(l16, SWS, "s70", 1024 * i)
        a(f"""
        s_lshr_b32 s72, s{S_SLOT}, 1
        s_add_u32 m0, s72, s{S_M0B}
        """)
        slot_adv()
        for i in range(2):
            a.dma((lc if kind < 2 else lw_) + i, (SCR, SCI, SWO)[kind], "s71", 1024 * i)
        if kind != 0:
            a(f"""
            s_add_u32 s{S_K}, s{S_K}, 1
            s_and_b32 s{S_K}, s{S_K}, 15
            """)

    a(f"s_mov_b32 m0, s{S_M0A}")
    a(f"s_mov_b32 s{S_SLOT}, 0x4000")
    for i in range(4):
        a.dma(lx + i, SX, "0", 1024 * i)
    issue(0)
    issue(1)
    issue(0)
    a("""
    s_waitcnt vmcnt(18)
    s_barrier
    s_waitcnt vmcnt(12)
    s_barrier
    """)
    issue(1)
    a(f"s_mov_b32 s{S_CNT}, 14")
    a("L_k3_l1:")
    for kind in range(2):
        a("s_waitcnt vmcnt(12)")
        a("s_barrier")
        issue(kind)
    a(f"""
    s_sub_u32 s{S_CNT}, s{S_CNT}, 1
    s_cmp_lg_u32 s{S_CNT}, 0
    s_cbranch_scc1 L_k3_l1
    s_mov_b32 s{S_CNT}, 16
    L_k3_l2:
    s_waitcnt vmcnt(12)
    s_barrier
    """)
    issue(2)
    a(f"""
    s_sub_u32 s{S_CNT}, s{S_CNT}, 1
    s_cmp_lg_u32 s{S_CNT}, 0
    s_cbranch_scc1 L_k3_l2
    s_waitcnt vmcnt(12)
    s_barrier
    s_waitcnt vmcnt(6)
    s_barrier
    s_waitcnt vmcnt(0)
    s_barrier
    L_k3_end:
    s_endpgm
    """)
    return a.text(), v.hi


def build(order=("k1", "k2", "k3")):
    ref = open(f"cdna_kernels/{NAME}.s.ref").read()
    hdr = [l for l in ref.split("\n") if l.startswith(";") and "@launch" not in l and "Override launch" not in l and "grid=ceil" not in l]
    ks = {"k1": (gen_k1(), K1_LDS), "k2": (gen_k2(), K2_LDS), "k3": (gen_k3(), K3_LDS)}
    s = "\n".join(hdr) + "\n"
    for k in order:
        s += f"; @launch kernel={k}_kernel grid=(256,1,1) block=(512,1,1) lds={ks[k][1]}\n"
    s += '.amdgcn_target "amdgcn-amd-amdhsa--gfx950"\n.text\n'
    for k in ks:
        s += kernel_head(f"{k}_kernel") + ks[k][0][0]
    s += '.section .rodata,"a"\n'
    for k in ks:
        s += kernel_desc(f"{k}_kernel", max(ks[k][0][1], 32))
        print(k, "vgprs", ks[k][0][1], file=sys.stderr)
    return s


if __name__ == "__main__":
    out = sys.argv[1] if len(sys.argv) > 1 else f"cdna_kernels/{NAME}.s"
    order = tuple(sys.argv[2].split(",")) if len(sys.argv) > 2 else ("k1", "k2", "k3")
    open(out, "w").write(build(order))
```

```python
import struct


def f32(x):
    return "0x%08x" % struct.unpack("<I", struct.pack("<f", x))[0]


def vr(b, n=1):
    return f"v{b}" if n == 1 else f"v[{b}:{b + n - 1}]"


def sr(b, n=1):
    return f"s{b}" if n == 1 else f"s[{b}:{b + n - 1}]"


class Alloc:
    def __init__(self, start, limit):
        self.n = start
        self.limit = limit
        self.hi = start

    def get(self, cnt=1, align=1):
        self.n = (self.n + align - 1) // align * align
        r = self.n
        self.n += cnt
        self.hi = max(self.hi, self.n)
        assert self.n <= self.limit, f"out of registers ({self.n} > {self.limit})"
        return r

    def mark(self):
        return self.n

    def reset(self, m):
        self.n = m


class Asm:
    def __init__(self):
        self.lines = []

    def __call__(self, s):
        for l in s.strip("\n").split("\n"):
            l = l.strip()
            if not l:
                continue
            if l.endswith(":") or l.startswith("."):
                self.lines.append(l)
            else:
                self.lines.append("    " + l)

    def c(self, s):
        self.lines.append("    ; " + s)

    def text(self):
        return "\n".join(self.lines) + "\n"

    def mfma(self, d, a, b, c=None):
        cs = vr(d, 16) if c is None else (c if isinstance(c, str) else vr(c, 16))
        self(f"v_mfma_f32_32x32x16_bf16 {vr(d, 16)}, {vr(a, 4)}, {vr(b, 4)}, {cs}")

    def rd128(self, d, addr, off):
        assert 0 <= off < 65536, off
        self(f"ds_read_b128 {vr(d, 4)}, v{addr} offset:{off}")

    def rdtr(self, d, addr, off):
        assert 0 <= off < 65536, off
        self(f"ds_read_b64_tr_b16 {vr(d, 2)}, v{addr} offset:{off}")

    def dma(self, addr, srd, soff, off=0):
        o = f" offset:{off}" if off else ""
        self(f"buffer_load_dwordx4 v{addr}, {sr(srd, 4)}, {soff} offen{o} lds")

    def srd(self, d, base, size):
        self(f"s_mov_b32 s{d}, s{base}")
        self(f"s_mov_b32 s{d + 1}, s{base + 1}")
        self(f"s_mov_b32 s{d + 2}, {hex(size)}")
        self(f"s_mov_b32 s{d + 3}, 0x20000")

    def srd_off(self, d, base, off, size):
        self(f"s_add_u32 s{d}, s{base}, {hex(off)}")
        self(f"s_addc_u32 s{d + 1}, s{base + 1}, 0")
        self(f"s_mov_b32 s{d + 2}, {hex(size)}")
        self(f"s_mov_b32 s{d + 3}, 0x20000")

    def srd_sel(self, d, base_t, base_f, size):
        self(f"s_cselect_b32 s{d}, s{base_t}, s{base_f}")
        self(f"s_cselect_b32 s{d + 1}, s{base_t + 1}, s{base_f + 1}")
        self(f"s_mov_b32 s{d + 2}, {hex(size)}")
        self(f"s_mov_b32 s{d + 3}, 0x20000")

    def wait(self, vm=None, lgkm=None):
        p = []
        if vm is not None:
            assert 0 <= vm <= 63
            p.append(f"vmcnt({vm})")
        if lgkm is not None:
            assert 0 <= lgkm <= 15
            p.append(f"lgkmcnt({lgkm})")
        self("s_waitcnt " + " ".join(p))

    stamps_on = False
    STV = 255

    def stamp(self, i):
        if not self.stamps_on:
            return
        self(f"""
        s_memtime s[88:89]
        s_memrealtime s[90:91]
        s_waitcnt lgkmcnt(0)
        v_writelane_b32 v{self.STV}, s88, {4 * i}
        v_writelane_b32 v{self.STV}, s89, {4 * i + 1}
        v_writelane_b32 v{self.STV}, s90, {4 * i + 2}
        v_writelane_b32 v{self.STV}, s91, {4 * i + 3}
        """)

    def stamp_store(self, lo, hi, wave, ws):
        if not self.stamps_on:
            return
        self(f"""
        s_add_u32 s92, s{ws}, 0x2000000
        s_addc_u32 s93, s{ws + 1}, 0
        s_mov_b32 s94, 0x10000
        s_mov_b32 s95, 0x20000
        v_mbcnt_lo_u32_b32 v254, -1, 0
        v_mbcnt_hi_u32_b32 v254, -1, v254
        v_cmp_le_u32 vcc, {4 * lo}, v254
        s_mov_b64 s[88:89], vcc
        v_cmp_gt_u32 vcc, {4 * hi}, v254
        s_and_b64 vcc, vcc, s[88:89]
        s_cmp_eq_u32 s3, {wave}
        s_cselect_b64 vcc, vcc, 0
        s_lshl_b32 s88, s2, 8
        v_lshl_add_u32 v254, v254, 2, s88
        v_mov_b32 v253, -16
        v_cndmask_b32 v254, v253, v254, vcc
        buffer_store_dword v{self.STV}, v254, s[92:95], 0 offen
        """)

    def nop(self, n):
        while n > 0:
            k = min(n, 16)
            self(f"s_nop {k - 1}")
            n -= k


def kernel_head(name):
    return f""".globl {name}
.p2align 8
.type {name},@function
{name}:
"""


def kernel_desc(name, vgpr, sgpr=96):
    acc = (vgpr + 3) // 4 * 4
    return f""".p2align 6
.amdhsa_kernel {name}
  .amdhsa_next_free_vgpr {vgpr}
  .amdhsa_next_free_sgpr {sgpr}
  .amdhsa_accum_offset {acc}
  .amdhsa_group_segment_fixed_size 0
  .amdhsa_kernarg_size 136
  .amdhsa_user_sgpr_count 2
  .amdhsa_user_sgpr_kernarg_segment_ptr 1
  .amdhsa_system_sgpr_workgroup_id_x 1
.end_amdhsa_kernel
"""
```

```python
import math
import sys
from asmlib import *

NAME = "concat_heads__ssm_conv_s5__grouped_kv_mqa__prompt"


def opt(name, default):
    for i, x in enumerate(sys.argv):
        if x.startswith(f"--{name}="):
            sys.argv.pop(i)
            return type(default)(x.split("=", 1)[1])
    return default


NA = opt("na", 8)
YST = opt("yst", "sc1")
OST = opt("ost", "")
YSTAG = opt("ystag", 0)
CODEPF = opt("codepf", 1)
HSC = opt("hsc", "sc1")

WS_O = 0
WS_H = 4 << 20
WS_KV = 12 << 20
WS_E = WS_KV + (256 << 10)
WS_FH = WS_E + (256 << 10)
WS_FO = WS_FH + (32 << 10)
WS_FK = WS_FO + (32 << 10)
WS_N = WS_FK + (4 << 10)
WS_SIZE = WS_N + 256
OOB = 0x40000000

P_XA, P_LRE, P_LIM, P_BRE, P_BIM, P_CRE, P_CIM, P_LDT = 36, 38, 40, 42, 44, 46, 48, 50
P_DSK, P_XB, P_WQ, P_WK, P_WV, P_WO, P_OUT, P_DBG, P_WS = 52, 54, 56, 58, 60, 62, 64, 66, 68
S_W, S_MB, S_NB, S_K0 = 3, 4, 5, 6
LOG2E = 1.4426950408889634
KSCALE = LOG2E / math.sqrt(32.0)

BR = 0x10000
SCR = 0x20000
SCR_E = SCR + 0x4000
SCR_N = SCR_E + 0x800
LDS_SIZE = SCR_N + 256
SPIN = 0x20000


def csq(a, r, i, t):
    a(f"""
    v_mul_f32 v{t}, v{i}, v{i}
    v_mul_f32 v{i}, v{r}, v{i}
    v_fma_f32 v{r}, v{r}, v{r}, -v{t}
    v_add_f32 v{i}, v{i}, v{i}
    """)


def cmad(a, dr, di, mr, mi, xr, xi, ur, ui):
    a(f"""
    v_fma_f32 v{dr}, v{mr}, v{xr}, v{ur}
    v_fma_f32 v{di}, v{mr}, v{xi}, v{ui}
    v_fma_f32 v{dr}, -v{mi}, v{xi}, v{dr}
    v_fmac_f32 v{di}, v{mi}, v{xr}
    """)


def gen():
    a = Asm()
    a(f"""
    s_cmp_ge_u32 s2, 256
    s_cbranch_scc1 L_end
    s_load_dwordx16 s[36:51], s[0:1], 0
    s_load_dwordx16 s[52:67], s[0:1], 64
    s_load_dwordx2 s[68:69], s[0:1], 128
    v_lshrrev_b32 v1, 6, v0
    s_and_b32 s70, s2, 7
    v_readfirstlane_b32 s{S_W}, v1
    s_lshr_b32 s71, s2, 3
    s_and_b32 s72, s70, 3
    s_lshr_b32 s73, s70, 2
    s_and_b32 s74, s71, 3
    s_lshr_b32 s75, s71, 2
    s_lshl_b32 s{S_MB}, s72, 2
    s_add_u32 s{S_MB}, s{S_MB}, s74
    s_lshl_b32 s{S_NB}, s73, 3
    s_add_u32 s{S_NB}, s{S_NB}, s75
    s_lshl_b32 s{S_K0}, s75, 1
    s_lshl_b32 s74, s74, 2
    s_add_u32 s{S_K0}, s{S_K0}, s74
    s_and_b32 s{S_K0}, s{S_K0}, 15
    v_and_b32 v0, 63, v0
    s_cmp_lt_u32 s{S_W}, 4
    s_cbranch_scc1 L_consumer
    """)
    loader(a)
    hi = consumer(a)
    return a.text(), hi


def loader(a):
    SXB, SKW, SXA, SB, SWQ, SWS, SCR_, SCI, SWO = 8, 12, 16, 20, 24, 28, 32, 84, 96
    S_LW, S_SLOT, S_KO, S_M0A, S_M0B, S_CNT, S_G, S_HB, S_OB, S_NON = 76, 77, 78, 79, 80, 81, 82, 83, 7, 100
    lkx, l16, la, lb, lx, lwq, lc, lxd, lpk, lph = 2, 4, 5, 9, 13, 17, 19, 21, 25, 26
    u0, u1, u2, u3 = 28, 29, 30, 31
    pv = 32
    a(f"""
    s_sub_u32 s{S_LW}, s{S_W}, 4
    v_lshlrev_b32 v{l16}, 4, v0
    v_lshrrev_b32 v{u0}, 4, v0
    v_and_b32 v{u1}, 7, v0
    v_xor_b32 v{u0}, v{u0}, v{u1}
    v_lshlrev_b32 v{u0}, 4, v{u0}
    v_lshrrev_b32 v{u2}, 3, v0
    v_lshl_add_u32 v{u2}, v{u2}, 11, v{u0}
    s_lshl_b32 s72, s{S_MB}, 18
    s_and_b32 s70, s{S_NB}, 7
    s_lshl_b32 s70, s70, 15
    s_add_u32 s70, s70, s72
    s_lshl_b32 s71, s{S_LW}, 7
    s_add_u32 s70, s70, s71
    v_add_u32 v{lkx}, s70, v{u2}
    v_xor_b32 v{lkx + 1}, 64, v{lkx}
    v_add_u32 v{lkx + 1}, {hex(8 * 2048 - 1024)}, v{lkx + 1}
    s_lshl_b32 s{S_M0A}, s{S_LW}, 12
    s_lshl_b32 s{S_M0B}, s{S_LW}, 11
    s_waitcnt lgkmcnt(0)
    """)
    a.srd(SXB, P_XB, 4 << 20)
    a(f"s_cmp_lt_u32 s{S_NB}, 8")
    a.srd_sel(SKW, P_WK, P_WV, 64 << 10)

    def issue_kv(s):
        a(f"""
        s_add_u32 m0, s{S_M0B}, {hex(s * 0x4000)}
        s_movk_i32 s70, {s * 512}
        """)
        for i in range(2):
            a.dma(lkx + i, SXB, "s70", 1024 * i)
        a(f"""
        s_add_u32 m0, s{S_M0A}, {hex(BR + s * 0x4000)}
        s_add_u32 s70, s{S_M0A}, {hex(s * 0x4000)}
        """)
        for i in range(4):
            a.dma(l16, SKW, "s70", 1024 * i)

    issue_kv(0)
    issue_kv(1)
    a(f"""
    v_bfe_u32 v{u3}, v0, 3, 2
    v_lshl_add_u32 v{u3}, v{u3}, 11, v{u0}
    v_lshrrev_b32 v{u0}, 5, v0
    v_lshl_add_u32 v{u3}, v{u0}, 16, v{u3}
    s_lshr_b32 s70, s{S_LW}, 1
    s_and_b32 s71, s{S_LW}, 1
    s_lshl_b32 s73, s70, 17
    s_add_u32 s73, s73, s72
    s_lshl_b32 s74, s71, 15
    s_add_u32 s73, s73, s74
    s_lshl_b32 s74, s{S_NB}, 17
    s_lshl_b32 s75, s{S_LW}, 15
    s_add_u32 s{S_G}, s74, s75
    s_lshl_b32 s75, s70, 16
    s_add_u32 s74, s74, s75
    s_lshl_b32 s75, s{S_LW}, 16
    s_add_u32 s75, s75, s72
    s_lshl_b32 s72, s{S_NB}, 7
    """)
    for i in range(4):
        x = f"v_xor_b32 v{u0}, 64, v{u3}" if i & 1 else f"v_mov_b32 v{u0}, v{u3}"
        y = f"v_xor_b32 v{u1}, 64, v{u2}" if i & 1 else f"v_mov_b32 v{u1}, v{u2}"
        a(f"""
        {x}
        {y}
        v_add_u32 v{u0}, {hex(i * (4 * 2048 - 1024))}, v{u0}
        v_add_u32 v{u1}, {hex(i * (8 * 2048 - 1024))}, v{u1}
        v_add_u32 v{la + i}, s73, v{u0}
        v_add_u32 v{lb + i}, s74, v{u1}
        v_add_u32 v{lx + i}, s75, v{u1}
        v_add_u32 v{lxd + i}, s72, v{lx + i}
        """)
        if i < 2:
            a(f"v_add_u32 v{lc + i}, s{S_G}, v{u1}")
    a(f"""
    v_bfe_u32 v{u0}, v0, 4, 1
    v_lshlrev_b32 v{u0}, 2, v{u0}
    v_and_b32 v{u1}, 7, v0
    v_xor_b32 v{u0}, v{u0}, v{u1}
    v_lshlrev_b32 v{u0}, 4, v{u0}
    v_lshrrev_b32 v{u1}, 3, v0
    v_lshl_add_u32 v{u0}, v{u1}, 11, v{u0}
    s_lshl_b32 s73, s{S_LW}, 15
    s_add_u32 s73, s73, s72
    v_add_u32 v{lwq}, s73, v{u0}
    v_add_u32 v{lwq + 1}, {hex(8 * 2048 - 1024)}, v{lwq}
    s_lshl_b32 s73, s{S_LW}, 10
    s_add_u32 s73, s73, {hex(WS_FK)}
    v_add_u32 v{lpk}, s73, v{l16}
    s_lshl_b32 s73, s{S_MB}, 11
    v_and_b32 v{u0}, 15, v0
    v_lshl_add_u32 v{lph}, v{u0}, 7, s73
    s_lshl_b32 s70, s{S_MB}, 2
    s_add_u32 s70, s70, s{S_LW}
    s_lshl_b32 s{S_HB}, s70, 17
    s_add_u32 s{S_HB}, s{S_HB}, {hex(WS_H)}
    s_lshl_b32 s{S_OB}, s70, 16
    s_add_u32 s{S_G}, s{S_M0B}, {hex(WS_KV)}
    s_cmp_eq_u32 s71, 0
    """)
    a.srd_sel(SB, P_BRE, P_BIM, 2 << 20)
    a.srd(SXA, P_XA, 4 << 20)
    a.srd(SWQ, P_WQ, 2 << 20)
    a.srd(SWS, P_WS, WS_SIZE)
    a.srd(SCR_, P_CRE, 2 << 20)
    a.srd(SCI, P_CIM, 2 << 20)
    a.srd(SWO, P_WO, 2 << 20)
    a(f"""
    s_add_u32 s{S_M0B}, s{S_M0B}, {hex(BR)}
    s_lshl_b32 s{S_KO}, s{S_K0}, 7
    s_mov_b32 s{S_SLOT}, 0
    s_waitcnt vmcnt(6)
    s_barrier
    s_sub_u32 s{S_M0B}, s{S_M0B}, {hex(BR)}
    """)
    issue_kv(2)
    issue_kv(3)
    a(f"s_add_u32 s{S_M0B}, s{S_M0B}, {hex(BR)}")

    def slot_adv():
        a(f"""
        s_add_u32 s{S_SLOT}, s{S_SLOT}, 0x4000
        s_and_b32 s{S_SLOT}, s{S_SLOT}, 0xffff
        """)

    def ko_adv():
        a(f"""
        s_add_u32 s{S_KO}, s{S_KO}, 128
        s_and_b32 s{S_KO}, s{S_KO}, 2047
        """)

    def dmah(addr, soff, off):
        o = f" offset:{off}" if off else ""
        a(f"buffer_load_dwordx4 v{addr}, {sr(SWS, 4)}, {soff} offen{o} {HSC} lds")

    def issue_u():
        a(f"s_add_u32 m0, s{S_SLOT}, s{S_M0A}")
        slot_adv()
        for i in range(4):
            a.dma(la + i, SXA, f"s{S_KO}", 1024 * i)
        a(f"s_add_u32 m0, m0, {hex(BR)}")
        a("s_nop 0")
        for i in range(4):
            a.dma(lb + i, SB, f"s{S_KO}", 1024 * i)
        ko_adv()

    def issue_q():
        a(f"""
        s_add_u32 m0, s{S_SLOT}, s{S_M0A}
        s_lshl_b32 s70, s{S_KO}, 10
        """)
        for i in range(4):
            a.dma(lx + i, SXB, f"s{S_KO}", 1024 * i)
        a(f"s_add_u32 m0, s{S_SLOT}, s{S_M0B}")
        slot_adv()
        for i in range(2):
            a.dma(lwq + i, SWQ, "s70", 1024 * i)
        ko_adv()

    def issue_att(adv=True):
        a(f"""
        s_add_u32 s70, s{S_SLOT}, s{S_M0B}
        s_add_u32 m0, s70, 0x2000
        """)
        if adv:
            slot_adv()
        else:
            a("s_nop 0")
        for i in range(2):
            dmah(l16, f"s{S_G}", 1024 * i)
        a(f"s_add_u32 s{S_G}, s{S_G}, 0x2000")

    def issue_yo(kind):
        a(f"s_add_u32 m0, s{S_SLOT}, s{S_M0A}")
        if kind < 2:
            a(f"""
            s_lshl_b32 s70, s{S_KO}, 6
            s_add_u32 s70, s70, s{S_HB}
            """)
            if kind == 1:
                a("s_add_u32 s70, s70, 0x1000")
        else:
            a(f"""
            s_lshl_b32 s70, s{S_KO}, 5
            s_add_u32 s70, s70, s{S_OB}
            s_lshl_b32 s71, s{S_KO}, 10
            """)
        for i in range(4):
            dmah(l16, "s70", 1024 * i)
        a(f"s_add_u32 m0, s{S_SLOT}, s{S_M0B}")
        slot_adv()
        for i in range(2):
            if kind < 2:
                a.dma(lc + i, (SCR_, SCI)[kind], f"s{S_KO}", 1024 * i)
            else:
                a.dma(lwq + i, SWO, "s71", 1024 * i)
        if kind != 0:
            ko_adv()

    def tick(n):
        a.wait(vm=n)
        a("s_barrier")

    def loop(tag, cnt, body):
        if cnt == 0:
            return
        a(f"s_mov_b32 s{S_CNT}, {cnt}")
        a(f"L_ld_{tag}:")
        body()
        a(f"""
        s_sub_u32 s{S_CNT}, s{S_CNT}, 1
        s_cmp_lg_u32 s{S_CNT}, 0
        s_cbranch_scc1 L_ld_{tag}
        """)

    def poll(tag, addr, soff, ndw, preissued=None):
        ld = f"buffer_load_dword{'x4' if ndw == 4 else ''} {vr(pv, ndw)}, v{addr}, {sr(SWS, 4)}, {soff} offen sc1"
        a(f"s_mov_b32 s73, {SPIN}")
        if preissued is None:
            a(ld)
        else:
            a.wait(vm=preissued)
            a(f"s_branch L_pc_{tag}")
        a(f"L_pl_{tag}:")
        a.wait(vm=0)
        a(f"L_pc_{tag}:")
        a(f"v_cmp_eq_u32 vcc, s{S_NON}, v{pv}")
        for i in range(1, ndw):
            a(f"""
            s_mov_b64 s[74:75], vcc
            v_cmp_eq_u32 vcc, s{S_NON}, v{pv + i}
            s_and_b64 vcc, vcc, s[74:75]
            """)
        a(f"""
        s_cmp_eq_u64 vcc, exec
        s_cbranch_scc1 L_pd_{tag}
        s_sub_u32 s73, s73, 1
        s_cbranch_scc1 L_pd_{tag}
        s_sleep 2
        {ld}
        s_branch L_pl_{tag}
        L_pd_{tag}:
        """)

    tick(12)
    issue_u()
    tick(14)
    issue_u()
    loop("u", 14, lambda: (tick(16), issue_u()))
    loop("q", 14, lambda: (tick(12), issue_q()))
    a(f"""
    v_mov_b32 v{u0}, {hex(SCR_N)}
    ds_read_b32 v{u0}, v{u0}
    buffer_load_dword v{pv}, v{lpk}, {sr(SWS, 4)}, 0 offen sc1
    """)
    tick(13)
    issue_q()
    tick(13)
    issue_q()
    a(f"""
    s_waitcnt lgkmcnt(0)
    v_readfirstlane_b32 s{S_NON}, v{u0}
    """)
    poll("kv", lpk, "0", 1, preissued=12)
    tick(12)
    a(f"s_add_u32 m0, s{S_M0A}, {hex(SCR)}")
    a("s_nop 0")
    for i in range(4):
        a.dma(lxd + i, SXA, "0", 1024 * i)
    issue_att()
    tick(12)
    issue_att()
    tick(8)
    issue_att()
    loop("a", NA - 3, lambda: (tick(4), issue_att()))
    tick(4)
    a(f"s_mov_b32 s72, {hex(WS_FH)}")
    poll("h", lph, "s72", 4)
    if not YSTAG:
        a(f"s_mov_b32 s{S_KO}, 0")
    issue_att(False)
    issue_yo(0)
    tick(8)
    issue_att(False)
    issue_yo(1)
    loop("c", (32 - NA - 2) // 2, lambda: [(tick(16), issue_att(False), issue_yo(k)) for k in range(2)])
    loop("y", NA // 2, lambda: [(tick(12), issue_yo(k)) for k in range(2)])
    tick(12)
    a(f"s_mov_b32 s72, {hex(WS_FO)}")
    poll("o", lph, "s72", 4)
    a(f"s_lshl_b32 s{S_KO}, s{S_K0}, 7")
    issue_yo(2)
    loop("o", 15, lambda: (tick(12), issue_yo(2)))
    tick(12)
    tick(6)
    tick(0)
    a("L_end:")
    a("s_endpgm")


def consumer(a):
    a("L_consumer:")
    a.stamp(0)
    v = Alloc(1, 253)
    vn, vhf, t0, t1, t2, t3, vL16 = (v.get() for _ in range(7))
    vA = v.get(4)
    vB = v.get(4)
    vW, vAl, vRd, vOut, vE, vEst, vF0, vF1, vNon, vDs, vIdx = (v.get() for _ in range(11))
    lr, li, cr, nci, m32r, m32i, m128r, m128i = (v.get() for _ in range(8))
    Es = v.get(8, 2)
    ONE = v.get(4, 4)
    Q = v.get(16, 4)
    O = v.get(32, 4)
    L = v.get(8, 4)
    S = v.get(32, 4)
    P = v.get(16, 4)
    KF = v.get(16, 4)
    VF = v.get(16, 4)
    ACC = v.get(64, 4)
    fr = S
    accQ, accK, ee = O, KF, KF
    accY, YF = ACC, ACC + 32
    S_WM, S_WN, S_CNT, S_NON = 76, 77, 80, 81
    SRD_WS, SRD_E, SRD_DBG, SRD_OUT, SRD_T0, SRD_T1, SRD_T2, SRD_T3 = 8, 12, 16, 20, 24, 28, 32, 84
    a(f"""
    s_and_b32 s{S_WM}, s{S_W}, 1
    s_lshr_b32 s{S_WN}, s{S_W}, 1
    v_and_b32 v{vn}, 31, v0
    v_lshrrev_b32 v{vhf}, 5, v0
    v_lshlrev_b32 v{vL16}, 4, v0
    s_lshl_b32 s70, s{S_NB}, 6
    s_lshl_b32 s71, s{S_WN}, 5
    s_add_u32 s70, s70, s71
    v_add_u32 v{t0}, s70, v{vn}
    v_lshlrev_b32 v{t1}, 1, v{t0}
    s_waitcnt lgkmcnt(0)
    """)
    a.srd(SRD_WS, P_WS, WS_SIZE)
    a.srd(SRD_DBG, P_DBG, 256)
    a.c("workgroup 0 / wave 0 picks this launch's hand-off tag: differs from the one left in the workspace")
    a(f"""
    s_or_b32 s70, s2, s{S_W}
    s_cmp_lg_u32 s70, 0
    s_cbranch_scc1 L_notag
    s_add_u32 s70, s{P_WS}, {hex(WS_N)}
    s_addc_u32 s71, s{P_WS + 1}, 0
    s_load_dword s72, s[70:71], 0
    v_mov_b32 v{t2}, 0
    v_mov_b32 v{t3}, {hex(WS_N)}
    s_waitcnt lgkmcnt(0)
    s_add_u32 s72, s72, 0x9e3779ba
    s_or_b32 s72, s72, 1
    v_mov_b32 v{vNon}, s72
    buffer_store_dword v{vNon}, v{t2}, {sr(SRD_DBG, 4)}, 0 offen sc1
    buffer_store_dword v{vNon}, v{t3}, {sr(SRD_WS, 4)}, 0 offen
    L_notag:
    """)
    a.srd(SRD_T0, P_LRE, 2048)
    a.srd(SRD_T1, P_LIM, 2048)
    a.srd(SRD_T2, P_LDT, 2048)
    a.srd(SRD_T3, P_DSK, 2048)
    a(f"""
    buffer_load_ushort v{lr}, v{t1}, {sr(SRD_T0, 4)}, 0 offen
    buffer_load_ushort v{li}, v{t1}, {sr(SRD_T1, 4)}, 0 offen
    buffer_load_ushort v{cr}, v{t1}, {sr(SRD_T2, 4)}, 0 offen
    buffer_load_ushort v{vDs}, v{t1}, {sr(SRD_T3, 4)}, 0 offen
    """)
    if CODEPF:
        a.c("pull the kernel's code into this XCD's L2 (one 128-B line per lane, 8 KB per wave)")
        a(f"""
        s_getpc_b64 s[70:71]
        s_lshl_b32 s72, s{S_W}, 13
        v_lshl_add_u32 v{t2}, v0, 7, s72
        s_and_b32 s96, s70, 0xffffff80
        s_mov_b32 s97, s71
        s_mov_b32 s98, L_code_end - L_notag - 512
        s_mov_b32 s99, 0x20000
        buffer_load_dword v{Es}, v{t2}, s[96:99], 0 offen
        """)
    a.srd_off(SRD_E, P_WS, WS_E, 256 << 10)
    a.srd(SRD_OUT, P_OUT, 16 << 20)
    a(f"""
    s_lshl_b32 s71, s{S_MB}, 14
    v_lshl_add_u32 v{vEst}, v{t0}, 4, s71
    s_lshl_b32 s70, s{S_MB}, 1
    s_add_u32 s70, s70, s{S_WM}
    s_lshl_b32 s70, s70, 19
    v_lshl_add_u32 v{vOut}, v{t0}, 2, s70
    v_lshl_add_u32 v{vOut}, v{vhf}, 15, v{vOut}
    s_lshl_b32 s70, s{S_WM}, 13
    v_add_u32 v{vAl}, s70, v{vL16}
    v_add_u32 v{vRd}, {hex(BR + 0x2000)}, v{vL16}
    v_bfe_u32 v{t0}, v{vn}, 1, 3
    v_xor_b32 v{t0}, v{t0}, v{vhf}
    v_lshlrev_b32 v{t0}, 4, v{t0}
    v_and_b32 v{t2}, 15, v0
    v_lshl_add_u32 v{t2}, v{t2}, 7, v{t0}
    v_lshl_add_u32 v{t0}, v{vn}, 7, v{t0}
    s_lshl_b32 s71, s{S_WN}, 13
    s_add_u32 s71, s71, {hex(BR)}
    s_lshl_b32 s72, s{S_W}, 11
    """)
    vKX = L
    vKW = L + 4
    for ks in range(4):
        a(f"""
        v_xor_b32 v{t1}, {ks * 32}, v{t0}
        v_add_u32 v{vA + ks}, s70, v{t1}
        v_add_u32 v{vB + ks}, s71, v{t1}
        v_xor_b32 v{t1}, {ks * 32}, v{t2}
        v_add_u32 v{vKX + ks}, s72, v{t1}
        """)

    def tr_addr(dst, hshift):
        a(f"""
        v_bfe_u32 v{t0}, v0, 2, 2
        v_lshl_add_u32 v{t1}, v{vhf}, {hshift}, v{t0}
        v_bfe_u32 v{t2}, v0, 4, 1
        v_and_b32 v{t3}, 3, v0
        v_lshlrev_b32 v{t3}, 3, v{t3}
        v_lshl_add_u32 v{t3}, v{t2}, 5, v{t3}
        s_lshl_b32 s70, s{S_WN}, 6
        v_add_u32 v{t2}, s70, v{t3}
        v_lshrrev_b32 v{t0}, 1, v{t0}
        v_lshlrev_b32 v{t0}, 6, v{t0}
        v_xor_b32 v{t2}, v{t2}, v{t0}
        v_lshl_add_u32 v{dst}, v{t1}, 7, v{t2}
        v_add_u32 v{dst}, {hex(BR)}, v{dst}
        """)

    tr_addr(vW, 3)
    a(f"""
    s_lshl_b32 s70, s{S_W}, 12
    s_add_u32 s70, s70, {hex(BR)}
    v_lshl_add_u32 v{vKW}, v{t1}, 6, v{t3}
    v_add_u32 v{vKW}, s70, v{vKW}
    s_lshl_b32 s70, s{S_WN}, 10
    s_add_u32 s70, s70, {SCR_E}
    v_lshl_add_u32 v{vE}, v{vn}, 3, s70
    """)
    for i in range(64):
        a(f"v_mov_b32 v{ACC + i}, 0")
    for i in range(32):
        a(f"v_mov_b32 v{accQ + i}, 0")
    for i in range(16):
        a(f"v_mov_b32 v{accK + i}, 0")
    a(f"""
    v_and_b32 v{t0}, 6, v0
    v_mov_b32 v{t1}, 0x3f803f80
    v_cmp_eq_u32 vcc, 0, v{t0}
    v_and_b32 v{t2}, 1, v0
    v_mov_b32 v{t3}, 0x44444444
    v_cndmask_b32 v{ONE}, 0, v{t1}, vcc
    v_cndmask_b32 v{ONE + 1}, 0, v{t1}, vcc
    v_cmp_eq_u32 vcc, 4, v{t0}
    v_mov_b32 v{t0}, 0xeeeeeeee
    v_mov_b32 v{vF0}, {hex(OOB)}
    v_cndmask_b32 v{ONE + 2}, 0, v{t1}, vcc
    v_cndmask_b32 v{ONE + 3}, 0, v{t1}, vcc
    v_cmp_eq_u32 vcc, 0, v{t2}
    s_lshl_b32 s70, s{S_MB}, 4
    s_add_u32 s82, s70, s{S_NB}
    v_cndmask_b32 v{vIdx}, v{t0}, v{t3}, vcc
    v_add_u32 v{t0}, s{S_W}, v0
    v_cmp_eq_u32 vcc, 0, v{t0}
    s_lshl_b32 s70, s82, 4
    s_add_u32 s70, s70, {hex(WS_FK)}
    v_mov_b32 v{t1}, s70
    v_cndmask_b32 v{vF1}, v{vF0}, v{t1}, vcc
    """)
    a.c("lambda_bar, 2c and powers")
    a(f"""
    s_waitcnt vmcnt({1 if CODEPF else 0})
    v_lshlrev_b32 v{cr}, 16, v{cr}
    v_mul_f32 v{cr}, {f32(LOG2E)}, v{cr}
    v_exp_f32 v{cr}, v{cr}
    v_lshlrev_b32 v{t0}, 16, v{lr}
    v_lshlrev_b32 v{t1}, 16, v{li}
    v_cvt_pk_bf16_f32 v{cr}, v{cr}, v{cr}
    v_lshlrev_b32 v{cr}, 16, v{cr}
    v_mul_f32 v{t2}, v{cr}, v{t0}
    v_mul_f32 v{t3}, v{cr}, v{t1}
    v_mul_f32 v{t2}, {f32(LOG2E)}, v{t2}
    v_mul_f32 v{t3}, {f32(1.0 / (2 * math.pi))}, v{t3}
    v_exp_f32 v{t2}, v{t2}
    v_rndne_f32 v{cr}, v{t3}
    v_sub_f32 v{t3}, v{t3}, v{cr}
    v_cos_f32 v{lr}, v{t3}
    v_sin_f32 v{li}, v{t3}
    v_mul_f32 v{cr}, v{t0}, v{t0}
    v_fmac_f32 v{cr}, v{t1}, v{t1}
    v_rcp_f32 v{t3}, v{cr}
    v_mul_f32 v{lr}, v{lr}, v{t2}
    v_mul_f32 v{li}, v{li}, v{t2}
    v_add_f32 v{t3}, v{t3}, v{t3}
    v_add_f32 v{t2}, -1.0, v{lr}
    v_mul_f32 v{cr}, v{t2}, v{t0}
    v_fmac_f32 v{cr}, v{li}, v{t1}
    v_mul_f32 v{nci}, v{t2}, v{t1}
    v_fma_f32 v{nci}, -v{li}, v{t0}, v{nci}
    v_mul_f32 v{cr}, v{cr}, v{t3}
    v_mul_f32 v{nci}, v{nci}, v{t3}
    v_mov_b32 v{m32r}, v{lr}
    v_mov_b32 v{m32i}, v{li}
    """)
    for _ in range(5):
        csq(a, m32r, m32i, t0)
    a(f"v_mov_b32 v{m128r}, v{m32r}")
    a(f"v_mov_b32 v{m128i}, v{m32i}")
    for _ in range(2):
        csq(a, m128r, m128i, t0)

    a(f"""
    s_mov_b32 s{S_CNT}, 4
    L_kv:
    s_barrier
    """)
    a.stamp(1)
    for ks in range(4):
        a.rd128(fr + 4 * ks, vKX + ks, 0)
        a.rdtr(fr + 16 + 4 * ks, vKW, ks * 1024)
        a.rdtr(fr + 18 + 4 * ks, vKW, ks * 1024 + 256)
    for ks in range(5):
        a(f"v_add_u32 v{vKX + ks}, 0x4000, v{vKX + ks}")
    a(f"""
    s_cmp_lt_u32 s{S_NB}, 8
    s_waitcnt lgkmcnt(0)
    s_cbranch_scc1 L_kv_k
    """)
    for ks in range(4):
        a.mfma(accK, fr + 4 * ks, fr + 16 + 4 * ks)
    a("s_branch L_kv_d")
    a("L_kv_k:")
    for ks in range(4):
        a.mfma(accK, fr + 16 + 4 * ks, fr + 4 * ks)
    a(f"""
    L_kv_d:
    s_sub_u32 s{S_CNT}, s{S_CNT}, 1
    s_cmp_lg_u32 s{S_CNT}, 0
    s_cbranch_scc1 L_kv
    s_lshl_b32 s70, s{S_W}, 12
    s_add_u32 s70, s70, {SCR}
    v_add_u32 v{t0}, s70, v{vL16}
    s_lshl_b32 s70, s{S_W}, 10
    s_add_u32 s70, s70, {SCR}
    v_add_u32 v{t1}, s70, v{vL16}
    v_mov_b32 v{t2}, 0
    buffer_load_dword v{vNon}, v{t2}, {sr(SRD_DBG, 4)}, 0 offen sc1
    s_nop 3
    """)
    for q in range(4):
        a(f"ds_write_b128 v{t0}, {vr(accK + 4 * q, 4)} offset:{1024 * q}")
    a.wait(lgkm=0)
    a("s_barrier")
    a.stamp(2)

    def uA(b, mt):
        return fr + 16 * b + 4 * mt

    def uB(b, c):
        return fr + 16 * b + 8 + 4 * c

    def uacc(mt, c):
        return ACC + 32 * mt + 16 * c

    def u_reads(b, slot, ks):
        return [lambda: a.rd128(uA(b, 0), vA + ks, slot * 16384),
                lambda: a.rd128(uB(b, 0), vB + ks, slot * 16384),
                lambda: a.rd128(uB(b, 1), vB + ks, slot * 16384 + 4096),
                lambda: a.rd128(uA(b, 1), vA + ks, slot * 16384 + 4096)]

    for q in range(4):
        a.rd128(accK + 4 * q, t1, 4096 * q)
    for r in u_reads(0, 0, 0):
        r()
    a(f"""
    s_lshl_b32 s70, s{S_MB}, 2
    s_bfe_u32 s71, s{S_NB}, 0x20001
    s_add_u32 s70, s70, s71
    s_lshl_b32 s70, s70, 1
    s_lshr_b32 s71, s{S_NB}, 3
    s_add_u32 s70, s70, s71
    s_lshl_b32 s70, s70, 1
    s_add_u32 s70, s70, s{S_WN}
    s_lshl_b32 s70, s70, 7
    s_add_u32 s70, s70, s{S_WM}
    s_lshl_b32 s70, s70, 3
    s_add_u32 s70, s70, {hex(WS_KV)}
    v_bfe_u32 v{t0}, v0, 4, 1
    v_mov_b32 v{t1}, s{S_WN}
    s_cmp_lt_u32 s{S_NB}, 8
    s_cselect_b32 s71, {f32(KSCALE)}, 1.0
    s_cselect_b64 vcc, -1, 0
    s_and_b32 s72, s{S_NB}, 1
    v_cndmask_b32 v{t0}, v{t1}, v{t0}, vcc
    v_cmp_eq_u32 vcc, s72, v{t0}
    s_waitcnt lgkmcnt(4)
    """)
    for i in range(4):
        a(f"v_add_f32 v{accK + i}, v{accK + i}, v{accK + 4 + i}")
        a(f"v_add_f32 v{accK + 8 + i}, v{accK + 8 + i}, v{accK + 12 + i}")
    a(f"v_cndmask_b32 v{t1}, v{vF0}, v{vL16}, vcc")
    for i in range(4):
        a(f"v_add_f32 v{accK + i}, v{accK + i}, v{accK + 8 + i}")
        a(f"v_mul_f32 v{accK + i}, s71, v{accK + i}")
    a(f"""
    v_cvt_pk_bf16_f32 v{accK + 4}, v{accK}, v{accK + 1}
    v_cvt_pk_bf16_f32 v{accK + 5}, v{accK + 2}, v{accK + 3}
    buffer_store_dwordx2 {vr(accK + 4, 2)}, v{t1}, {sr(SRD_WS, 4)}, s70 offen sc1
    s_mov_b32 s{S_CNT}, 4
    .p2align 3
    L_u:
    """)
    for slot in range(4):
        for ks in range(4):
            b = ks & 1
            a.wait(lgkm=0)
            if ks == 3:
                a("s_barrier")
                rd = u_reads(b ^ 1, (slot + 1) & 3, 0)
            else:
                a("s_nop 0")
                rd = u_reads(b ^ 1, slot, ks + 1)
            a.mfma(uacc(0, 0), uA(b, 0), uB(b, 0))
            rd[0]()
            rd[1]()
            a.mfma(uacc(0, 1), uA(b, 0), uB(b, 1))
            rd[2]()
            rd[3]()
            a.mfma(uacc(1, 1), uA(b, 1), uB(b, 1))
            if (slot, ks) == (3, 2):
                a.c("K/V stores done + tag known (pass 0); flag goes out one pass later, after barriers")
                a(f"""
                s_waitcnt vmcnt(0)
                v_readfirstlane_b32 s{S_NON}, v{vNon}
                buffer_store_dword v{vNon}, v{vF0}, {sr(SRD_WS, 4)}, 0 offen sc1
                s_cmp_eq_u32 s{S_NON}, 0
                s_cbranch_scc1 L_tagwait
                L_tagok:
                v_mov_b32 v{vF0}, v{vF1}
                v_mov_b32 v{vF1}, {hex(OOB)}
                """)
            if (slot, ks) == (3, 3):
                a(f"""
                s_sub_u32 s{S_CNT}, s{S_CNT}, 1
                s_cmp_lg_u32 s{S_CNT}, 0
                """)
            a.mfma(uacc(1, 0), uA(b, 1), uB(b, 0))
    a("s_cbranch_scc1 L_u")

    def fA(b, mt, k2):
        return fr + 24 * b + 4 * (2 * k2 + mt)

    def fB(b, k2):
        return fr + 24 * b + 16 + 4 * k2

    def q_reads(b, slot, kp):
        out = []
        for k2 in range(2):
            ks = 2 * kp + k2
            out.append(lambda k2=k2, ks=ks: a.rdtr(fB(b, k2), vW, slot * 16384 + ks * 2048))
            out.append(lambda k2=k2, ks=ks: a.rdtr(fB(b, k2) + 2, vW, slot * 16384 + ks * 2048 + 512))
            out.append(lambda k2=k2, ks=ks: a.rd128(fA(b, 0, k2), vA + ks, slot * 16384))
            out.append(lambda k2=k2, ks=ks: a.rd128(fA(b, 1, k2), vA + ks, slot * 16384 + 4096))
        return out

    def y_reads(b, slot, kp):
        out = []
        for k2 in range(2):
            ks = 2 * kp + k2
            out.append(lambda k2=k2, ks=ks: a.rd128(fB(b, k2), vB + ks, slot * 16384))
            out.append(lambda k2=k2, ks=ks: a.rd128(fA(b, 0, k2), vAl, slot * 16384 + ks * 1024))
            out.append(lambda k2=k2, ks=ks: a.rd128(fA(b, 1, k2), vAl, slot * 16384 + 4096 + ks * 1024))
        return out

    def o_reads(b, slot, kp):
        out = []
        for k2 in range(2):
            ks = 2 * kp + k2
            out.append(lambda k2=k2, ks=ks: a.rdtr(fB(b, k2), vW, slot * 16384 + ks * 2048))
            out.append(lambda k2=k2, ks=ks: a.rdtr(fB(b, k2) + 2, vW, slot * 16384 + ks * 2048 + 1024))
            out.append(lambda k2=k2, ks=ks: a.rd128(fA(b, 0, k2), vAl, slot * 16384 + ks * 1024))
            out.append(lambda k2=k2, ks=ks: a.rd128(fA(b, 1, k2), vAl, slot * 16384 + 4096 + ks * 1024))
        return out

    def job_loop(tag, acc, reads, iters, swap=False, hook=None, tailhook=None):
        a(f"s_mov_b32 s{S_CNT}, {iters}")
        a(".p2align 3")
        a(f"L_{tag}:")
        for slot in range(4):
            for kp in range(2):
                a.wait(lgkm=0)
                if kp == 0:
                    a("s_nop 0")
                    rd = reads(1, slot, 1)
                else:
                    a("s_barrier")
                    rd = reads(0, (slot + 1) & 3, 0)
                mf = [(acc + 16 * mt, fA(kp, mt, k2), fB(kp, k2)) for k2 in range(2) for mt in range(2)]
                per = (len(rd) + 2) // 3
                for i, m in enumerate(mf):
                    if swap:
                        a.mfma(m[0], m[2], m[1])
                    else:
                        a.mfma(*m)
                    for r in rd[i * per:(i + 1) * per]:
                        r()
                if hook:
                    hook(slot, kp)
        if tailhook:
            tailhook()
        a(f"""
        s_sub_u32 s{S_CNT}, s{S_CNT}, 1
        s_cmp_lg_u32 s{S_CNT}, 0
        s_cbranch_scc1 L_{tag}
        """)

    a.wait(lgkm=0)
    a.stamp(3)
    for r in q_reads(0, 0, 0):
        r()
    a(f"""
    v_mov_b32 v{t0}, {hex(SCR_N)}
    ds_write_b32 v{t0}, v{vNon}
    s_lshl_b32 s71, s{S_WM}, 9
    v_lshl_add_u32 v{t3}, v{vhf}, 8, v{vE}
    v_add_u32 v{t3}, s71, v{t3}
    """)
    a.c("pass 1: end state of the lane's 32-token segment")
    pp = [(Es, Es + 1), (Es + 2, Es + 3)]
    cur = (uacc(0, 0), uacc(0, 1))
    for i in range(1, 32):
        mt, r = i >> 4, i & 15
        d = pp[(i + 1) & 1]
        cmad(a, d[0], d[1], lr, li, cur[0], cur[1], uacc(mt, 0) + r, uacc(mt, 1) + r)
        cur = d
    a(f"ds_write_b64 v{t3}, {vr(Es, 2)}")

    def cmul_inplace(ur, ui):
        a(f"""
        v_mul_f32 v{t0}, v{nci}, v{ui}
        v_mul_f32 v{t1}, v{nci}, v{ur}
        v_fma_f32 v{ur}, v{cr}, v{ur}, v{t0}
        v_fma_f32 v{ui}, -v{cr}, v{ui}, v{t1}
        """)

    a.c("u <- conj(2c u)")
    for mt in range(2):
        for r in range(16):
            cmul_inplace(uacc(mt, 0) + r, uacc(mt, 1) + r)

    def e_loads():
        a(f"""
        v_lshlrev_b32 v{t0}, 14, v{vhf}
        v_sub_u32 v{t0}, v{vEst}, v{t0}
        """)
        for k in range(8):
            a(f"v_subrev_u32 v{t1}, {hex(16384 * (2 * k + 1))}, v{t0}")
            a(f"buffer_load_dwordx4 {vr(ee + 4 * k, 4)}, v{t1}, {sr(SRD_E, 4)}, 0 offen sc1")

    def q_hook(slot, kp):
        if (slot, kp) == (0, 1):
            a(f"""
            s_cmp_eq_u32 s{S_CNT}, 4
            s_cbranch_scc1 L_hook_e
            s_cmp_eq_u32 s{S_CNT}, 1
            s_cbranch_scc1 L_hook_l
            L_hook_back:
            """)

    a.stamp(4)
    job_loop("q", accQ, q_reads, 4, swap=True, hook=q_hook)
    a.stamp(5)

    a(f"""
    s_mov_b32 s73, {SPIN}
    L_echk:
    s_lshl_b32 s71, s{S_MB}, 5
    s_waitcnt vmcnt(0)
    """)
    for k in range(8):
        a(f"""
        v_cmp_eq_u32 s[74:75], s{S_NON}, v{ee + 4 * k + 1}
        v_cmp_eq_u32 vcc, s{S_NON}, v{ee + 4 * k + 3}
        s_and_b64 vcc, vcc, s[74:75]
        s_bcnt1_i32_b64 s70, vcc
        s_sub_u32 s71, s71, s70
        """)
    a(f"""
    s_cmp_eq_u32 s71, 0
    s_cbranch_scc0 L_eretry
    L_eok:
    """)
    a.stamp(6)
    for mt in range(2):
        for i in range(8):
            a(f"v_cvt_pk_bf16_f32 v{Q + 8 * mt + i}, v{accQ + 16 * mt + 2 * i}, v{accQ + 16 * mt + 2 * i + 1}")
    m256r, m256i = L, L + 1
    hp = [(L + 2, L + 3), (L + 4, L + 5)]
    a(f"v_mov_b32 v{m256r}, v{m128r}")
    a(f"v_mov_b32 v{m256i}, v{m128i}")
    csq(a, m256r, m256i, t0)
    cur = (ee + 28, ee + 30)
    for n, k in enumerate(range(6, -1, -1)):
        d = hp[n & 1]
        cmad(a, d[0], d[1], m256r, m256i, cur[0], cur[1], ee + 4 * k, ee + 4 * k + 2)
        cur = d
    assert cur == hp[0]
    oth = hp[1]
    a(f"""
    v_mov_b32 v{oth[0]}, v{cur[0]}
    v_mov_b32 v{oth[1]}, v{cur[1]}
    s_lshl_b32 s70, s{S_WM}, 1
    v_add_u32 v{t2}, s70, v{vhf}
    v_permlane32_swap_b32 v{cur[0]}, v{oth[0]}
    v_permlane32_swap_b32 v{cur[1]}, v{oth[1]}
    """)
    H = (L + 6, L + 7)
    cmad(a, H[0], H[1], m128r, m128i, oth[0], oth[1], cur[0], cur[1])
    for j in range(3):
        a(f"v_cmp_lt_u32 vcc, {j}, v{t2}")
        cmad(a, oth[0], oth[1], m32r, m32i, H[0], H[1], Es + 2 * j, Es + 2 * j + 1)
        a(f"v_cndmask_b32 v{H[0]}, v{H[0]}, v{oth[0]}, vcc")
        a(f"v_cndmask_b32 v{H[1]}, v{H[1]}, v{oth[1]}, vcc")
    cmul_inplace(H[0], H[1])
    def Kf(j, m):
        return KF + 8 * (j & 1) + 4 * m

    def Vf(j, m):
        return VF + 8 * (j & 1) + 4 * m

    for m in range(2):
        a.rd128(Kf(0, m), vRd, m * 1024)
    for m in range(2):
        a.rd128(Vf(0, m), vRd, 2048 + m * 1024)
    vTw, vTr, nli = Es, Es + 4, m32r
    a(f"""
    v_sub_f32 v{nli}, 0, v{li}
    v_and_b32 v{t0}, 1, v{vn}
    v_bfe_u32 v{t1}, v{vn}, 1, 1
    v_xor_b32 v{t1}, v{t1}, v{vhf}
    v_lshl_add_u32 v{t0}, v{t1}, 2, v{t0}
    v_bfe_u32 v{t1}, v{vn}, 2, 1
    v_lshl_add_u32 v{t0}, v{t1}, 1, v{t0}
    v_lshlrev_b32 v{t0}, 4, v{t0}
    v_lshl_add_u32 v{t0}, v{vn}, 7, v{t0}
    s_lshl_b32 s70, s{S_W}, 13
    v_add_u32 v{t0}, s70, v{t0}
    """)
    for q in range(4):
        a(f"v_xor_b32 v{vTw + q}, {16 * q}, v{t0}")
    a(f"""
    v_bfe_u32 v{t0}, v0, 1, 1
    v_bfe_u32 v{t1}, v0, 2, 1
    v_xor_b32 v{t0}, v{t0}, v{t1}
    v_bfe_u32 v{t1}, v0, 4, 1
    v_lshl_add_u32 v{t0}, v{t1}, 1, v{t0}
    v_bfe_u32 v{t1}, v0, 3, 1
    v_lshl_add_u32 v{t0}, v{t1}, 2, v{t0}
    v_lshlrev_b32 v{t0}, 4, v{t0}
    v_and_b32 v{t1}, 1, v0
    v_lshl_add_u32 v{t0}, v{t1}, 3, v{t0}
    v_bfe_u32 v{t1}, v0, 2, 2
    v_lshl_add_u32 v{t0}, v{t1}, 7, v{t0}
    v_lshl_add_u32 v{t0}, v{vhf}, 10, v{t0}
    v_add_u32 v{t0}, s70, v{t0}
    """)
    for tt in range(2):
        for half in range(2):
            a(f"v_xor_b32 v{vTr + 2 * tt + half}, {64 * tt + 32 * half}, v{t0}")
    a.wait(lgkm=0)
    a.mfma(S, Kf(0, 0), Q, "0")
    a.mfma(S, Kf(0, 1), Q + 4)
    a.c("pass 2 with conj(lambda)")
    cur = H
    for i in range(32):
        mt, r = i >> 4, i & 15
        ur, ui = uacc(mt, 0) + r, uacc(mt, 1) + r
        a(f"""
        v_fmac_f32 v{ur}, v{lr}, v{cur[0]}
        v_fmac_f32 v{ui}, v{lr}, v{cur[1]}
        v_fmac_f32 v{ur}, v{li}, v{cur[1]}
        v_fmac_f32 v{ui}, v{nli}, v{cur[0]}
        """)
        cur = (ur, ui)
        if i & 7 == 7:
            q = i >> 3
            for c in range(2):
                b0 = uacc(mt, c) + (r - 7)
                for j in range(4):
                    a(f"v_cvt_pk_bf16_f32 v{b0 + j}, v{b0 + 2 * j}, v{b0 + 2 * j + 1}")
                a(f"ds_write_b128 v{vTw + q}, {vr(b0, 4)} offset:{4096 * c}")
    xf, dg = S + 16, P
    a(f"""
    s_cmp_eq_u32 s{S_WN}, 0
    s_cselect_b64 vcc, -1, 0
    v_cndmask_b32 v{t2}, v{vA + 2}, v{vA}, vcc
    v_cndmask_b32 v{t3}, v{vA + 3}, v{vA + 1}, vcc
    v_add_u32 v{t2}, {hex(SCR)}, v{t2}
    v_add_u32 v{t3}, {hex(SCR)}, v{t3}
    """)
    a.wait(lgkm=0)
    for kk in range(2):
        for mt in range(2):
            a.rd128(xf + 4 * (2 * kk + mt), (t2, t3)[kk], mt * 4096)
    ho = ACC + 32
    for kk in range(4):
        for half in range(2):
            a.rdtr(ho + 4 * kk + 2 * half, vTr + half, kk * 2048 + half * 512)
    a(f"""
    s_lshl_b32 s70, s{S_MB}, 1
    s_add_u32 s70, s70, s{S_WM}
    s_lshl_b32 s70, s70, 8
    s_lshl_b32 s71, s{S_NB}, 3
    s_add_u32 s70, s70, s71
    s_lshl_b32 s71, s{S_WN}, 1
    s_add_u32 s70, s70, s71
    s_lshl_b32 s70, s70, 10
    s_add_u32 s70, s70, {hex(WS_H)}
    s_add_u32 s71, s70, 0x1000
    s_add_u32 s72, s70, 0x20000
    s_add_u32 s73, s70, 0x21000
    v_and_b32 v{t0}, 1, v{vn}
    v_lshlrev_b32 v{t0}, 4, v{t0}
    v_lshrrev_b32 v{t1}, 1, v{vn}
    v_lshlrev_b32 v{t2}, 2, v{vhf}
    v_sub_u32 v{t1}, v{t1}, v{t2}
    v_lshlrev_b32 v{vDs}, v{t0}, v{vDs}
    """)
    zl = [O + i for i in range(32)] + [L + i for i in range(8)] + [P + 8 + i for i in range(8)] + [Vf(1, 0) + i for i in range(8)]
    for kk in range(2):
        for q in range(4):
            a(f"v_cmp_eq_u32 vcc, {8 * kk + q}, v{t1}")
            a(f"v_mov_b32 v{zl.pop()}, 0")
            a(f"v_mov_b32 v{zl.pop()}, 0")
            a(f"v_cndmask_b32 v{dg + 4 * kk + q}, 0, v{vDs}, vcc")
    a.wait(lgkm=0)
    for kk in range(4):
        for half in range(2):
            a.rdtr(ho + 16 + 4 * kk + 2 * half, vTr + 2 + half, kk * 2048 + half * 512)
    for kk in range(4):
        a(f"buffer_store_dwordx4 {vr(ho + 4 * kk, 4)}, v{vL16}, {sr(SRD_WS, 4)}, s{70 + (kk >> 1)} offen offset:{1024 * (kk & 1)} sc1")
        a.mfma(accY + 16 * (kk & 1), xf + 4 * kk, dg + 4 * (kk >> 1), "0" if kk < 2 else None)
    while zl:
        a(f"v_mov_b32 v{zl.pop()}, 0")
    a.wait(lgkm=0)
    for kk in range(4):
        a(f"buffer_store_dwordx4 {vr(ho + 16 + 4 * kk, 4)}, v{vL16}, {sr(SRD_WS, 4)}, s{72 + (kk >> 1)} offen offset:{1024 * (kk & 1)} sc1")
    a(f"""
    s_lshl_b32 s70, s82, 7
    s_lshl_b32 s71, s{S_W}, 2
    s_add_u32 s70, s70, s71
    v_cmp_eq_u32 vcc, 0, v0
    v_mov_b32 v{t1}, s70
    s_lshl_b32 s71, s{S_WN}, 12
    v_cndmask_b32 v{vF0}, v{vF1}, v{t1}, vcc
    v_mov_b32 v{S + 30}, 0
    v_mov_b32 v{S + 31}, 0
    s_mov_b32 s83, {hex(WS_FH)}
    """)
    for ks in range(4):
        a(f"v_subrev_u32 v{vB + ks}, s71, v{vB + ks}")
    a.stamp(7)
    a(f"s_mov_b32 s{S_CNT}, {NA // 4}")
    a("s_branch L_att_entry")

    def step(t, j, slot, i, n, pv=True, qk=True, ex=True, rd=True, x1=None, x2=None):
        o = t ^ 1
        jq, jv = j + t, j - (1 - t)

        def E(k):
            return f"v_exp_f32 v{S + 16 * t + k}, v{S + 16 * t + k}" if ex else None

        def C(k):
            return f"v_cvt_pk_bf16_f32 v{P + 8 * t + k}, v{S + 16 * t + 2 * k}, v{S + 16 * t + 2 * k + 1}" if ex else None

        def M(d, x, y, c=None):
            return f"v_mfma_f32_32x32x16_bf16 {vr(d, 16)}, {vr(x, 4)}, {vr(y, 4)}, {c or vr(d, 16)}"

        def R(d, ad, off):
            return f"ds_read_b128 {vr(d, 4)}, v{ad} offset:{off}" if rd else None

        nop = "s_nop 0"
        C7 = f"v_cvt_pk_bf16_f32 v{P + 8 * o + 7}, v{S + 16 * o + 14}, v{S + 16 * o + 15}"
        PV0 = M(O + 16 * o, Vf(jv, 0), P + 8 * o)
        PV1 = M(O + 16 * o, Vf(jv, 1), P + 8 * o + 4)
        QK0 = M(S + 16 * o, Kf(jq, 0), Q + 8 * o, "0") if qk else nop
        QK1 = M(S + 16 * o, Kf(jq, 1), Q + 8 * o + 4) if qk else nop
        SM = f"v_smfmac_f32_16x16x64_bf16 {vr(L + 4 * o, 4)}, {vr(ONE, 4)}, {vr(P + 8 * o, 8)}, v{vIdx}"
        base = Kf(j + 1, 0) if t == 0 else Vf(j + 1, 0)
        D = [R(base + 4 * m, vRd, slot * 16384 + i * 2048 + m * 1024) for m in range(2)]
        W = "s_waitcnt lgkmcnt(0)" if rd else None
        if n == 0:
            seq = [PV0, D[0], C7, E(0), E(1), E(2), QK0, D[1], C(0), E(3), E(4), C(1), E(5), QK1, x1, C(2), E(6), E(7), E(8),
                   PV1, W, C(3), E(9), E(10), C(4), E(11), SM, x2, C(5), E(12), E(13), E(14), C(6), E(15)]
        else:
            b = i & 1
            G = [M(accY + 16 * m, YF + 12 * (b ^ 1) + 4 * m, YF + 12 * (b ^ 1) + 8) for m in range(2)]
            D += [R(YF + 12 * b + 8, vB + i, slot * 16384),
                  R(YF + 12 * b, vAl, slot * 16384 + i * 1024),
                  R(YF + 12 * b + 4, vAl, slot * 16384 + 4096 + i * 1024)]
            seq = [PV0, D[0], D[1], C7, E(0), E(1), QK0, D[2], D[3], C(0), E(2), E(3), QK1, D[4], C(1), E(4), E(5), E(6),
                   G[0], x1, C(2), E(7), E(8), C(3), PV1, E(9), E(10), C(4), E(11), G[1], W, C(5), E(12), E(13), E(14),
                   SM, x2, C(6), E(15)]
        for s in seq:
            if s:
                a(s)

    def att_loop(tag, n, entry=None, flag=False):
        a(".p2align 3")
        a(f"L_{tag}:")
        for slot in range(4):
            for i in range(4):
                if entry and (slot, i) == (0, 2):
                    a(f"{entry}:")
                x1 = x2 = None
                if i == 3:
                    x2 = "s_barrier"
                if (slot, i) == (3, 1):
                    x2 = f"s_sub_u32 s{S_CNT}, s{S_CNT}, 1"
                if (slot, i) == (3, 2):
                    x2 = f"s_cmp_lg_u32 s{S_CNT}, 0"
                if flag and (slot, i) == (3, 2):
                    x1 = "s_waitcnt vmcnt(0)"
                if flag and (slot, i) == (3, 3):
                    x1 = f"buffer_store_dword v{vNon}, v{vF0}, {sr(SRD_WS, 4)}, s83 offen sc1"
                step(i & 1, 1 + (i >> 1), slot, i, n, x1=x1, x2=x2)
        a(f"s_cbranch_scc1 L_{tag}")

    att_loop("att0", 0, entry="L_att_entry", flag=True)
    a.stamp(8)
    for i in range(12):
        a(f"v_mov_b32 v{YF + 12 + i}, 0")
    a(f"s_mov_b32 s{S_CNT}, {(32 - NA) // 4}")
    att_loop("att2", 2)
    a.stamp(9)
    step(0, 1, 0, 0, 2, rd=False)
    step(1, 1, 0, 1, 0, qk=False, rd=False)
    step(0, 2, 0, 2, 0, qk=False, ex=False, rd=False)
    a(f"""
    s_lshl_b32 s70, s{S_MB}, 1
    s_add_u32 s70, s70, s{S_WM}
    s_lshl_b32 s70, s70, 6
    s_lshl_b32 s71, s{S_NB}, 1
    s_add_u32 s70, s70, s71
    s_add_u32 s70, s70, s{S_WN}
    s_lshl_b32 s78, s70, 11
    s_add_u32 s79, s78, 0x10000
    v_mov_b32 v{t2}, 0
    v_add_f32 v{L}, v{L}, v{L + 1}
    """)
    for i in range(16):
        a(f"v_fmac_f32 v{t2}, 0, v{O + i}")
    a(f"v_add_f32 v{L + 4}, v{L + 4}, v{L + 5}")
    for i in range(16):
        a(f"v_fmac_f32 v{t2}, 0, v{O + 16 + i}")
    a.c("exp without max subtraction was safe iff 2^-30 <= l <= 2^60 and o finite; else redo with the true row max")
    a(f"""
    v_min_f32 v{t0}, v{L}, v{L + 4}
    v_add_f32 v{t1}, v{L}, v{L + 4}
    v_cmp_le_f32 vcc, {f32(2.0 ** -30)}, v{t0}
    s_mov_b64 s[72:73], vcc
    v_cmp_ge_f32 vcc, {f32(2.0 ** 60)}, v{t1}
    s_and_b64 s[72:73], s[72:73], vcc
    v_cmp_eq_f32 vcc, 0, v{t2}
    s_and_b64 s[72:73], s[72:73], vcc
    s_cmp_eq_u64 s[72:73], exec
    s_cbranch_scc0 L_slow
    L_fin:
    v_rcp_f32 v{t0}, v{L}
    v_rcp_f32 v{t1}, v{L + 4}
    """)
    for r in y_reads(0, 0, 0):
        r()
    for t in range(2):
        for i in range(16):
            a(f"v_mul_f32 v{O + 16 * t + i}, v{O + 16 * t + i}, v{(t0, t1)[t]}")
        for i in range(8):
            a(f"v_cvt_pk_bf16_f32 v{KF + 8 * t + i}, v{O + 16 * t + 2 * i}, v{O + 16 * t + 2 * i + 1}")
        for m in range(2):
            a(f"buffer_store_dwordx4 {vr(KF + 8 * t + 4 * m, 4)}, v{vL16}, {sr(SRD_WS, 4)}, s{78 + t} offen offset:{1024 * m} sc1")
    for i in range(32):
        a(f"v_mov_b32 v{O + i}, 0")
    tr_addr(vW, 2)
    a(f"s_mov_b32 s83, {hex(WS_FO)}")
    a.stamp(10)

    def y_hook(slot, kp):
        if (slot, kp) == (1, 1):
            a(f"""
            s_waitcnt vmcnt(0)
            buffer_store_dword v{vNon}, v{vF0}, {sr(SRD_WS, 4)}, s83 offen sc1
            v_mov_b32 v{vF0}, v{vF1}
            """)

    job_loop("y", accY, y_reads, NA // 4, hook=y_hook)
    a.wait(lgkm=0)
    a.stamp(11)
    for r in o_reads(0, 0, 0):
        r()
    a.nop(4)

    def store_acc(acc, coloff, pol):
        for mt in range(2):
            for r in range(16):
                row = 32 * mt + 8 * (r >> 2) + (r & 3)
                a(f"s_mov_b32 s70, {hex(row * 8192 + coloff)}")
                a(f"buffer_store_dword v{acc + 16 * mt + r}, v{vOut}, {sr(SRD_OUT, 4)}, s70 offen {pol}")

    store_acc(accY, 0, YST)
    a.stamp(12)
    job_loop("o", O, o_reads, 4)
    a.nop(12)
    a.stamp(13)
    store_acc(O, 4096, OST)
    a.stamp(14)
    if a.stamps_on:
        a.wait(vm=0)
    a.stamp(15)
    a.stamp_store(0, 16, 0, P_WS)
    a("s_endpgm")

    a("L_hook_e:")
    for j in range(4):
        a(f"ds_read_b64 {vr(Es + 2 * j, 2)}, v{vE} offset:{256 * j}")
    a(f"""
    v_add_u32 v{t0}, s{S_WM}, v{vhf}
    v_cmp_eq_u32 vcc, 0, v{t0}
    v_mov_b32 v{ee + 1}, v{vNon}
    v_mov_b32 v{ee + 3}, v{vNon}
    v_cndmask_b32 v{t1}, v{vF1}, v{vEst}, vcc
    s_waitcnt lgkmcnt(0)
    """)
    cmad(a, ee, ee + 2, m32r, m32i, Es, Es + 1, Es + 2, Es + 3)
    cmad(a, ee + 4, ee + 5, m32r, m32i, ee, ee + 2, Es + 4, Es + 5)
    cmad(a, ee, ee + 2, m32r, m32i, ee + 4, ee + 5, Es + 6, Es + 7)
    a(f"""
    buffer_store_dwordx4 {vr(ee, 4)}, v{t1}, {sr(SRD_E, 4)}, 0 offen sc1
    s_branch L_hook_back
    L_hook_l:
    """)
    e_loads()
    a("s_branch L_hook_back")
    a(f"""
    L_eretry:
    s_sub_u32 s73, s73, 1
    s_cbranch_scc1 L_eok
    s_sleep 2
    """)
    e_loads()
    a("s_branch L_echk")
    a(f"""
    L_tagwait:
    s_mov_b32 s73, {SPIN}
    v_mov_b32 v{t2}, 0
    L_tagw1:
    s_sub_u32 s73, s73, 1
    s_cbranch_scc1 L_tagok
    buffer_load_dword v{vNon}, v{t2}, {sr(SRD_DBG, 4)}, 0 offen sc1
    s_waitcnt vmcnt(0)
    v_readfirstlane_b32 s{S_NON}, v{vNon}
    s_cmp_eq_u32 s{S_NON}, 0
    s_cbranch_scc1 L_tagw1
    s_branch L_tagok
    """)
    NM = S + 16
    a("L_slow:")
    for t in range(2):
        q, o_, l_ = Q + 8 * t, O + 16 * t, L + 4 * t
        a(f"""
        s_mov_b32 s70, {hex(WS_KV)}
        v_mov_b32 v{t3}, 0xff800000
        L_smax{t}:
        buffer_load_dwordx4 {vr(KF, 4)}, v{vL16}, {sr(SRD_WS, 4)}, s70 offen sc1
        buffer_load_dwordx4 {vr(KF + 4, 4)}, v{vL16}, {sr(SRD_WS, 4)}, s70 offen offset:1024 sc1
        s_waitcnt vmcnt(0)
        """)
        a.mfma(S, KF, q, "0")
        a.mfma(S, KF + 4, q + 4)
        a.nop(16)
        for i in range(8):
            a(f"v_max3_f32 v{t3}, v{S + 2 * i}, v{S + 2 * i + 1}, v{t3}")
        a(f"""
        s_add_u32 s70, s70, 0x1000
        s_cmp_lt_u32 s70, {hex(WS_KV + 64 * 4096)}
        s_cbranch_scc1 L_smax{t}
        v_mov_b32 v{t2}, v{t3}
        s_nop 1
        v_permlane32_swap_b32 v{t2}, v{t3}
        s_nop 1
        v_max_f32 v{t3}, v{t2}, v{t3}
        """)
        for i in range(16):
            a(f"v_sub_f32 v{NM + i}, 0, v{t3}")
            a(f"v_mov_b32 v{o_ + i}, 0")
        for i in range(4):
            a(f"v_mov_b32 v{l_ + i}, 0")
        a(f"""
        s_mov_b32 s70, {hex(WS_KV)}
        L_sloop{t}:
        buffer_load_dwordx4 {vr(KF, 4)}, v{vL16}, {sr(SRD_WS, 4)}, s70 offen sc1
        buffer_load_dwordx4 {vr(KF + 4, 4)}, v{vL16}, {sr(SRD_WS, 4)}, s70 offen offset:1024 sc1
        buffer_load_dwordx4 {vr(VF, 4)}, v{vL16}, {sr(SRD_WS, 4)}, s70 offen offset:2048 sc1
        buffer_load_dwordx4 {vr(VF + 4, 4)}, v{vL16}, {sr(SRD_WS, 4)}, s70 offen offset:3072 sc1
        s_waitcnt vmcnt(0)
        """)
        a.mfma(S, KF, q, NM)
        a.mfma(S, KF + 4, q + 4)
        a.nop(16)
        for i in range(16):
            a(f"v_exp_f32 v{S + i}, v{S + i}")
        a("s_nop 0")
        for i in range(8):
            a(f"v_cvt_pk_bf16_f32 v{P + i}, v{S + 2 * i}, v{S + 2 * i + 1}")
        a.nop(2)
        a.mfma(o_, VF, P)
        a.mfma(o_, VF + 4, P + 4)
        a(f"v_smfmac_f32_16x16x64_bf16 {vr(l_, 4)}, {vr(ONE, 4)}, {vr(P, 8)}, v{vIdx}")
        a(f"""
        s_add_u32 s70, s70, 0x1000
        s_cmp_lt_u32 s70, {hex(WS_KV + 64 * 4096)}
        s_cbranch_scc1 L_sloop{t}
        s_nop 15
        v_add_f32 v{l_}, v{l_}, v{l_ + 1}
        """)
    a("s_branch L_fin")
    a("L_code_end:")
    return v.hi


def build():
    ref = open(f"cdna_kernels/{NAME}.s.ref").read()
    hdr = [l for l in ref.split("\n") if l.startswith(";") and "@launch" not in l]
    body, hi = gen()
    print("vgprs", hi, file=sys.stderr)
    s = "\n".join(hdr) + "\n"
    s += f"; @launch grid=(256,1,1) block=(512,1,1) lds={LDS_SIZE}\n"
    s += '.amdgcn_target "amdgcn-amd-amdhsa--gfx950"\n.text\n'
    s += kernel_head(f"{NAME}_kernel") + body
    s += "    s_endpgm\n"
    s += '.section .rodata,"a"\n'
    s += kernel_desc(f"{NAME}_kernel", 256, 102)
    return s


if __name__ == "__main__":
    if "--stamps" in sys.argv:
        sys.argv.remove("--stamps")
        Asm.stamps_on = True
    out = sys.argv[1] if len(sys.argv) > 1 else f"cdna_kernels/{NAME}.s"
    open(out, "w").write(build())
```

```python
import sys, re
from asmlib import *
src, out, order = sys.argv[1], sys.argv[2], sys.argv[3].split(",")
s = open(src).read()
NAME = "concat_heads__ssm_conv_s5__grouped_kv_mqa__prompt_kernel"
m = re.search(r"; @launch (grid=\S+ block=\S+ lds=\d+)\n", s)
geo = m.group(1)
sizes = {0: 4 << 20, 3: 2 << 20, 4: 2 << 20, 5: 2 << 20, 6: 2 << 20, 9: 4 << 20, 10: 2 << 20, 13: 2 << 20}
def touch(stride_log2, full):
    a = Asm()
    a("s_cmp_ge_u32 s2, 256\ns_cbranch_scc1 L_t%d_end" % full)
    a("s_load_dwordx16 s[36:51], s[0:1], 0\ns_load_dwordx16 s[52:67], s[0:1], 64\ns_load_dwordx2 s[68:69], s[0:1], 128\ns_waitcnt lgkmcnt(0)")
    if full:
        a("s_lshl_b32 s3, s2, 14\nv_lshlrev_b32 v1, 6, v0")
        for i, sz in sizes.items():
            a.srd(8, 36 + 2 * i, sz)
            a("buffer_load_dword v2, v1, s[8:11], s3 offen\ns_waitcnt vmcnt(8)")
    else:
        a("v_lshlrev_b32 v1, 16, v0")
        allsz = dict(sizes); allsz.update({1: 2048, 2: 2048, 7: 2048, 8: 2048, 11: 65536, 12: 65536, 14: 16 << 20, 15: 256, 16: 16 << 20})
        for i, sz in allsz.items():
            a.srd(8, 36 + 2 * i, sz)
            a("buffer_load_dword v2, v1, s[8:11], 0 offen")
    a("s_waitcnt vmcnt(0)\nL_t%d_end:\ns_endpgm" % full)
    return a.text()
def echo(i, j, mode):
    a = Asm()
    t = f"{i}_{j}{mode}"
    a(f"""s_cmp_ge_u32 s2, 1
    s_cbranch_scc1 L_e{t}_end
    s_load_dwordx2 s[68:69], s[0:1], 128
    v_mov_b32 v4, 0
    v_mov_b32 v5, -1
    v_mov_b32 v6, 0
    ds_write_b32 v4, v5
    ds_write_b32 v4, v6 offset:4
    ds_write_b32 v4, v6 offset:8
    s_waitcnt lgkmcnt(0)
    s_add_u32 s8, s68, 0x2000000
    s_addc_u32 s9, s69, 0
    s_mov_b32 s10, 0x10000
    s_mov_b32 s11, 0x20000
    v_lshlrev_b32 v1, 8, v0
    buffer_load_dword v2, v1, s[8:11], 0 offen offset:{16 * i + 8}
    buffer_load_dword v3, v1, s[8:11], 0 offen offset:{16 * j + 8}
    s_waitcnt vmcnt(0)
    s_barrier
    v_sub_u32 v7, v3, v2
    ds_min_u32 v4, v2
    ds_max_u32 v4, v3 offset:4
    ds_add_u32 v4, v7 offset:8
    s_waitcnt lgkmcnt(0)
    s_barrier
    ds_read_b32 v2, v4
    ds_read_b32 v3, v4 offset:4
    ds_read_b32 v7, v4 offset:8
    s_waitcnt lgkmcnt(0)
    v_sub_u32 v2, v3, v2
    v_lshrrev_b32 v7, 8, v7
    s_nop 1
    v_readfirstlane_b32 s20, {'v2' if mode == 'x' else 'v7'}
    s_memrealtime s[24:25]
    s_waitcnt lgkmcnt(0)
    s_min_u32 s20, s20, 20000
    L_e{t}_sp:
    s_memrealtime s[26:27]
    s_waitcnt lgkmcnt(0)
    s_sub_u32 s21, s26, s24
    s_cmp_lt_u32 s21, s20
    s_cbranch_scc1 L_e{t}_sp
    L_e{t}_end:
    s_endpgm""")
    return a.text()
helpers = {"empty": "    s_endpgm\n", "tlb": touch(16, 0), "full": touch(0, 1)}
for k in order:
    if k.startswith("e_"):
        _, i, j, mode = k.split("_")
        helpers[k] = echo(int(i), int(j), mode)
lines = ""
for k in order:
    if k == "main": lines += f"; @launch kernel={NAME} {geo}\n"
    else: lines += f"; @launch kernel=h{k}_kernel grid=(256,1,1) block=(256,1,1) lds=64\n"
s = s.replace(m.group(0), lines)
code = ""; desc = ""
for k in set(order) - {"main"}:
    code += kernel_head(f"h{k}_kernel") + helpers[k]
    desc += kernel_desc(f"h{k}_kernel", 32)
s = s.replace('.section .rodata,"a"\n', code + '.section .rodata,"a"\n' + desc)
open(out, "w").write(s)
```
